```python
import torch

def _softmax(x, axis=-1):
    return torch.softmax(x, dim=axis)

def _gelu(x):
    return torch.nn.functional.gelu(x, approximate='tanh')

def _silu(x):
    return torch.nn.functional.silu(x)

def _sigmoid(x):
    return torch.sigmoid(x)

def _layernorm(x, axis=-1, eps=1e-05):
    m = x.mean(dim=axis, keepdim=True)
    v = x.var(dim=axis, keepdim=True, unbiased=False)
    return (x - m) / torch.sqrt(v + eps)

def _scatter_add(tgt, idx, src, axis=0):
    return tgt.clone().index_add_(axis, idx, src)

def _segment_sum(src, seg, n):
    out = torch.zeros((n,) + src.shape[1:], dtype=src.dtype)
    return out.index_add_(0, seg, src)

def _pad(x, pw):
    flat = tuple((v for pair in reversed(pw) for v in pair))
    return torch.nn.functional.pad(x, flat)
kernel_name = 'gated_mix__compressed_kv_cla__mixer_gmlp__prompt'

def setup_inputs():

    _w = lambda a: (lambda t: t.to(torch.bfloat16) if t.is_floating_point() else t)(torch.as_tensor(a))

    def _A_setup():
        B, H, Sq, Sk, D, M = (1, 16, 2048, 2048, 256, 448)
        Dc = 4 * D
        return {'x': _w((lambda *s: torch.randn(*s, dtype=torch.bfloat16) * 0.05)(B, Sq, M)), 'c_kv': _w((lambda *s: torch.randn(*s, dtype=torch.bfloat16) * 0.8)(B, Sk, Dc)), 'w_q': _w((lambda *s: torch.randn(*s, dtype=torch.bfloat16) * 6.4)(M, H, D) * M ** (-0.5)), 'w_uk': _w((lambda *s: torch.randn(*s, dtype=torch.bfloat16) * 6.4)(Dc, H, D) * Dc ** (-0.5)), 'w_uv': _w((lambda *s: torch.randn(*s, dtype=torch.bfloat16) * 0.8)(Dc, H, D) * Dc ** (-0.5)), 'w_o': _w((lambda *s: torch.randn(*s, dtype=torch.bfloat16) * 0.8)(H, D, M) * (H * D) ** (-0.5))}
    _A_in = _A_setup()

    def _B_setup():
        B, S, D, F = (1, 2048, 448, 1792)
        Fh = F // 2
        return {'x': _w((lambda *s: torch.randn(*s, dtype=torch.bfloat16) * 0.05)(B, S, D)), 'w_in': _w((lambda *s: torch.randn(*s, dtype=torch.bfloat16) * 0.4)(D, 2 * Fh)), 'w_sp': _w(0.01 * (lambda *s: torch.randn(*s, dtype=torch.bfloat16) * 0.4)(S, S)), 'b_sp': _w(1.0 + 0.01 * (lambda *s: torch.randn(*s, dtype=torch.bfloat16) * 0.05)(S)), 'w_out': _w((lambda *s: torch.randn(*s, dtype=torch.bfloat16) * 0.05)(Fh, D))}
    _B_in = _B_setup()
    return {'A_x': _A_in['x'], 'A_c_kv': _A_in['c_kv'], 'A_w_q': _A_in['w_q'], 'A_w_uk': _A_in['w_uk'], 'A_w_uv': _A_in['w_uv'], 'A_w_o': _A_in['w_o'], 'B_x': _B_in['x'], 'B_w_in': _B_in['w_in'], 'B_w_sp': _B_in['w_sp'], 'B_b_sp': _B_in['b_sp'], 'B_w_out': _B_in['w_out'], 'gate_w': _w((lambda *s: torch.randn(*s, dtype=torch.bfloat16) * 0.05)(448) * 16.0)}

def reference(A_x, A_c_kv, A_w_q, A_w_uk, A_w_uv, A_w_o, B_x, B_w_in, B_w_sp, B_b_sp, B_w_out, gate_w):

    def _A_ref(x, c_kv, w_q, w_uk, w_uv, w_o):
        B, Sq, M = (x.shape[0], x.shape[1], x.shape[2])
        Sk = c_kv.shape[1]
        H, D = (w_q.shape[1], w_q.shape[2])
        q = torch.einsum('bqm,mhd->bhqd', x, w_q)
        k = torch.einsum('bkc,chd->bhkd', c_kv, w_uk)
        v = torch.einsum('bkc,chd->bhkd', c_kv, w_uv)
        scores = torch.einsum('bhqd,bhkd->bhqk', q, k) * D ** (-0.5)
        off = Sk - Sq
        qi = torch.arange(Sq)[:, None]
        kj = torch.arange(Sk)[None, :]
        cmask = kj <= qi + off
        scores = torch.where(cmask[None, None], scores, -1000000000.0)
        p = _softmax(scores, axis=-1)
        ctx = torch.einsum('bhqk,bhkd->bhqd', p, v)
        return torch.einsum('bhqd,hdm->bqm', ctx, w_o)

    def _B_ref(x, w_in, w_sp, b_sp, w_out):
        B, S, D = x.shape
        F = w_in.shape[-1]
        Fh = F // 2
        z = _gelu(torch.einsum('bsd,df->bsf', x, w_in))
        z1 = z[..., :Fh].clone()
        z2 = _layernorm(z[..., Fh:], axis=-1)
        g = torch.einsum('ts,bsf->btf', w_sp, z2) + b_sp[None, :, None]
        return torch.einsum('bsf,fd->bsd', z1 * g, w_out)
    x = A_x
    g = _sigmoid((x * gate_w).sum(-1, keepdims=True))
    a = _A_ref(x, A_c_kv, A_w_q, A_w_uk, A_w_uv, A_w_o)
    b = _B_ref(x, B_w_in, B_w_sp, B_b_sp, B_w_out)
    return g * a + (1 - g) * b
```

```python
from common import *
from l1 import f2h, dpp_add, OOB
K = 1024
THR = 8.0
BIG = 1e30

V_L16 = 0; V_RD0 = 2; V_RD1 = 3
V_L = 4
V_T = 8
V_D = 14
V_NINF = 15
RING = 16
NM = 32; PP = 48
S = lambda b, i, t: 64 + 32 * b + 4 * (i * 4 + t)
Q = lambda t, s: 128 + 4 * (t * 8 + s)
O = lambda d, t: 4 * (d * 4 + t)

class AS:
    H, QB, C0, N, NU, ROLE, PID = 50, 51, 52, 53, 54, 55, 56
    J = 57; KOFF, VOFF, KEND, VEND = 58, 59, 60, 61
    T0, T1 = 62, 63; WL = 64; PAR, QH = 65, 66; REL = 67; ST = 68; T2 = 69
    MK = 70
    DBG = 16

def dma_elem(slot, off, end):
    o = [Grp([I(f's_cmp_lt_u32 s{off}, s{end}'), I(f's_cselect_b32 s{AS.T0}, s{off}, {OOB}'), I(f's_add_u32 s{off}, s{off}, 32768')])]
    for q in range(8):
        if q % 4 == 0:
            g = [I(f's_add_u32 m0, s{AS.WL}, {slot * 32768 + q * 1024}')]
            m0t = g[0].t
            if q == 4: g.append(I(f's_add_u32 s{AS.T0}, s{AS.T0}, 4096'))
            o.append(Grp(g))
        i = I(f'buffer_load_dwordx4 v{V_L16}, {sr(SRD_WS,4)}, s{AS.T0} offen offset:{(q % 4) * 1024} lds', tag='dma')
        i.m0 = m0t
        o.append(i)
    return o

def rd(slot, f, tag):
    base = V_RD0 if slot < 2 else V_RD1
    return I(f'ds_read_b128 {vr(RING + 4 * (f % 4), 4)}, v{base} offset:{(slot % 2) * 32768 + f * 1024}', tag=tag)

def at(items, pos):
    for k, x in enumerate(items): x.pos = pos + 1e-4 * k; x.pin = True
    return items

def place_dma(d):
    o = at([d[0]], 1.6) + at([d[1]], 2.6)
    for q in range(4): o += at([d[2 + q]], 4 + 8 * q + 0.1)
    o += at([d[6]], 33.6)
    for q in range(4): o += at([d[7 + q]], 36 + 8 * q + 0.1)
    return o

def frag_side(slot, next_slot, vmn, pre=True):
    side = []
    for f in range(16):
        if f > 0 and not (next_slot is not None and f >= 14): side += at([W_lg(('f', f))], 4 * f - 1 + 0.6)
        if f + 3 < 16: side += at([rd(slot, f + 3, ('f', f + 3))], 4 * f)
    if next_slot is not None:
        side += at([I('s_waitcnt lgkmcnt(0)'), I(f's_waitcnt vmcnt({vmn})'), I('s_barrier')], 55.6)
        side += at([rd(next_slot, 0, ('n', 0)), rd(next_slot, 1, ('n', 1))], 56)
        side += at([rd(next_slot, 2, ('n', 2))], 60)
        side += at([W_lg(('n', 0))], 63.5)
    return side

def qk_mfmas(b, zero=False):
    mf = []
    for f in range(16):
        i, s = f // 8, f % 8
        for t in range(4):
            d = vr(S(b, i, t), 4)
            c = d if s else ('0' if zero else vr(NM + 4 * t, 4))
            mf.append(I(f'v_mfma_f32_16x16x32_bf16 {d}, {vr(RING + 4 * (f % 4), 4)}, {vr(Q(t, s), 4)}, {c}'))
    return mf

def pv_mfmas():
    return [I(f'v_mfma_f32_16x16x32_bf16 {ar(O(f, t), 4)}, {vr(RING + 4 * (f % 4), 4)}, {vr(PP + 4 * t, 4)}, {ar(O(f, t), 4)}')
            for f in range(16) for t in range(4)]

def exp_cvt(b):
    o = []
    for t in range(4):
        regs_ = [S(b, 0, t) + r for r in range(4)] + [S(b, 1, t) + r for r in range(4)]
        o += [I(f'v_exp_f32 v{x}, v{x}') for x in regs_]
        o += [I(f'v_cvt_pk_bf16_f32 v{PP + 4 * t + k}, v{regs_[2*k]}, v{regs_[2*k+1]}') for k in range(4)]
    return o

def lsum(b):
    return [I(f'v_add_f32 v{V_L + t}, v{V_L + t}, v{S(b, i, t) + r}') for i in range(2) for r in range(4) for t in range(4)]

def maxchk(b):
    vals = [S(b, i, t) + r for i in range(2) for t in range(4) for r in range(4)]
    a, c = V_T, V_T + 1
    o = [I(f'v_max3_f32 v{a}, v{vals[0]}, v{vals[1]}, v{vals[2]}'), I(f'v_max3_f32 v{c}, v{vals[3]}, v{vals[4]}, v{vals[5]}')]
    k = 6; w = 0
    while k + 1 < 32:
        d = (a, c)[w % 2]; w += 1
        o.append(I(f'v_max3_f32 v{d}, v{d}, v{vals[k]}, v{vals[k+1]}')); k += 2
    o.append(I(f'v_max_f32 v{a}, v{a}, v{c}'))
    o.append(I(f'v_cmp_lt_f32 vcc, {f2h(THR)}, v{a}'))
    return o

def mask_ops(b):
    o = [I(f'v_subrev_u32 v{V_T + 2}, s{AS.REL}, v{V_D}'), I(f's_sub_u32 s{AS.REL}, s{AS.REL}, 64')]
    items = [(i, t, r) for i in range(2) for t in range(4) for r in range(4)]
    for a in range(0, 32, 3):
        grp = items[a:a + 3]
        for k, (i, t, r) in enumerate(grp):
            c = -(16 * (i - t) + r)
            if -16 <= c <= 64: o.append(I(f'v_cmp_lt_i32 {sr(AS.MK + 2 * k, 2)}, {c}, v{V_T + 2}'))
            else:
                o.append(I(f'v_cmp_lt_i32 {sr(AS.MK + 2 * k, 2)}, {c + 16}, v{V_T + 3}'))
        for k, (i, t, r) in enumerate(grp):
            x = S(b, i, t) + r
            o.append(I(f'v_cndmask_b32 v{x}, v{x}, v{V_NINF}, {sr(AS.MK + 2 * k, 2)}'))
    o.insert(1, I(f'v_add_u32 v{V_T + 3}, 16, v{V_T + 2}'))
    return o

def xlane(op, d, t):
    o = []
    for sw in ('v_permlane16_swap_b32', 'v_permlane32_swap_b32'):
        o += [I(f'v_mov_b32 v{b}, v{a}') for a, b in zip(d, t)]
        o += [I(f'{sw} v{a}, v{b}') for a, b in zip(d, t)]
        o += [I(f'{op} v{a}, v{a}, v{b}') for a, b in zip(d, t)]
    return o

def rowmax_update(b, first):
    D = [PP + t for t in range(4)]; T = [PP + 4 + t for t in range(4)]
    o = []
    for t in range(4):
        v = [S(b, i, t) + r for i in range(2) for r in range(4)]
        o += [I(f'v_max3_f32 v{D[t]}, v{v[0]}, v{v[1]}, v{v[2]}'), I(f'v_max3_f32 v{D[t]}, v{D[t]}, v{v[3]}, v{v[4]}'),
              I(f'v_max3_f32 v{D[t]}, v{D[t]}, v{v[5]}, v{v[6]}'), I(f'v_max_f32 v{D[t]}, v{D[t]}, v{v[7]}')]
    o += xlane('v_max_f32', D, T)
    o += [I(f'v_max_f32 v{D[t]}, {f2h(-BIG) if first else 0}, v{D[t]}') for t in range(4)]
    for t in range(4):
        o += [I(f'v_sub_f32 v{S(b, i, t) + r}, v{S(b, i, t) + r}, v{D[t]}') for i in range(2) for r in range(4)]
        if first: o += [I(f'v_sub_f32 v{NM + 4 * t + r}, 0, v{D[t]}') for r in range(4)]
        else: o += [I(f'v_sub_f32 v{NM + 4 * t + r}, v{NM + 4 * t + r}, v{D[t]}') for r in range(4)]
    if not first:
        o += [I(f'v_exp_f32 v{T[t]}, -v{D[t]}') for t in range(4)]
        o += [I(f'v_mul_f32 v{V_L + t}, v{V_L + t}, v{T[t]}') for t in range(4)]
        X = PP + 8
        for d in range(16):
            for t in range(4):
                x = X + 4 * (t % 2)
                o += [I(f'v_accvgpr_read_b32 v{x + r}, a{O(d, t) + r}') for r in range(4)]
                o += [I(f'v_mul_f32 v{x + r}, v{x + r}, v{T[t]}') for r in range(4)]
                o += [I(f'v_accvgpr_write_b32 a{O(d, t) + r}, v{x + r}') for r in range(4)]
    return o

PRE_LG = [('f', 1), ('f', 2)]
def block(mf, side):
    w = weave(mf, side)
    check_m0(w)
    return resolve_waits(w, lg_out=PRE_LG)

def phaseA(b):
    rs = 1 + 2 * b
    side = frag_side(rs, (rs + 1) % 4, 15)
    side += place_dma(dma_elem((rs + 3) % 4, AS.VOFF, AS.VEND))
    side += spread(exp_cvt(b), 0.2, 56)
    return block(qk_mfmas(1 - b), side)

def phaseB(b, masked):
    rs = (2 + 2 * b) % 4
    side = frag_side(rs, (rs + 1) % 4, 15)
    side += place_dma(dma_elem((rs + 3) % 4, AS.KOFF, AS.KEND))
    if masked:
        side += spread(mask_ops(1 - b), 4, 40) + spread(maxchk(1 - b), 41, 60) + spread(lsum(b), 0.2, 60)
    else:
        side += spread(lsum(b), 0.2, 60) + spread(maxchk(1 - b), 6, 58)
    return block(pv_mfmas(), side)

def final(b):
    rs = (2 + 2 * b) % 4
    o = [I('s_waitcnt vmcnt(0)'), I('s_barrier')] + [rd(rs, f, ('f', f)) for f in range(3)] + exp_cvt(b) + [W_lg(('f', 0))]
    side = frag_side(rs, None, 0) + spread(lsum(b), 0.2, 60)
    return resolve_waits(o + weave(pv_mfmas(), side))

def epilogue(par, L):
    o = []
    NMo = [NM + 4 * t for t in range(4)]
    X = 64
    ST = X
    PT = X + 8
    GA = X + 16
    PS = X + 20
    SC = X + 28; WA = X + 32
    TT = X + 36
    VA = V_T
    o += xlane('v_add_f32', [V_L + t for t in range(4)], [TT + t for t in range(4)])
    for t in range(4):
        o += [I(f'v_mov_b32 v{ST + 2 * t}, v{NMo[t]}'), I(f'v_mov_b32 v{ST + 2 * t + 1}, v{V_L + t}')]
    o += [I(f's_lshl_b32 s{AS.T0}, s{S_WAVE}, 11'), I(f's_add_u32 s{AS.T0}, s{AS.T0}, {128 * K}'), I(f'v_add_u32 v{VA}, s{AS.T0}, v{V_L16}'),
          I(f'v_xor_b32 v{VA + 1}, 4096, v{VA}'),
          I(f'ds_write_b128 v{VA}, {vr(ST, 4)}'), I(f'ds_write_b128 v{VA}, {vr(ST + 4, 4)} offset:1024'),
          I('s_waitcnt vmcnt(0) lgkmcnt(0)'), I('s_barrier'),
          I(f'ds_read_b128 {vr(PT, 4)}, v{VA + 1}'), I(f'ds_read_b128 {vr(PT + 4, 4)}, v{VA + 1} offset:1024')]
    o += [I(f'v_and_b32 v{VA + 2}, 15, v{V_LANE}'), I(f's_lshl_b32 s{AS.T0}, s{AS.QH}, 6'), I(f'v_add_u32 v{VA + 2}, s{AS.T0}, v{VA + 2}'),
          I(f'v_lshlrev_b32 v{VA + 3}, 2, v{VA + 2}'), I(f'v_lshlrev_b32 v{VA + 2}, 3, v{VA + 2}'),
          I(f's_lshl_b32 s{AS.T0}, s{AS.QB}, 9'), I(f's_add_u32 s{AS.T0}, s{AS.T0}, {GATE}'),
          I(f's_lshl_b32 s{AS.T1}, s{AS.PID}, 10'), I(f's_add_u32 s{AS.T1}, s{AS.T1}, {PSTAT}')]
    o += [I(f'buffer_load_dword v{GA + t}, v{VA + 3}, {sr(SRD_WS,4)}, s{AS.T0} offen offset:{64 * t}') for t in range(4)]
    o += [I(f's_lshl_b32 s{AS.T2}, s{AS.PID}, 16'), I(f's_add_u32 s{AS.T2}, s{AS.T2}, {PART + par * 4 * 8192}'),
          I(f's_lshl_b32 s{AS.ST}, s{AS.QH}, 12'), I(f's_add_u32 s{AS.T2}, s{AS.T2}, s{AS.ST}')]
    o += [I(f's_cmp_eq_u32 s{AS.ROLE}, 2'), I(f's_cbranch_scc0 {L}_nomerge1'),
          I(f's_lshr_b32 s{AS.ST}, s{AS.PID}, 5'), I(f's_lshl_b32 s{AS.ST}, s{AS.ST}, 2'), I(f'v_mov_b32 v{TT}, 0'),
          I(f'{L}_poll:'), I(f'buffer_load_dword v{TT + 1}, v{TT}, {sr(AS.DBG,4)}, s{AS.ST} offen sc1'), I('s_waitcnt vmcnt(0)'),
          I(f'v_readfirstlane_b32 s{AS.J}, v{TT + 1}'), I(f's_bitcmp1_b32 s{AS.J}, s{AS.PID}'), I(f's_cbranch_scc0 {L}_poll')]
    o += [I(f'buffer_load_dwordx2 {vr(PS + 2 * t, 2)}, v{VA + 2}, {sr(SRD_WS,4)}, s{AS.T1} offen offset:{128 * t} sc1') for t in range(4)]
    o += [I(f's_mov_b32 s{AS.ST}, s{AS.T2}')]
    for p in range(4):
        o += [I(f'buffer_load_dwordx4 {vr(128 + 16 * p + 4 * t, 4)}, v{V_L16}, {sr(SRD_WS,4)}, s{AS.ST} offen offset:{1024 * t} sc1') for t in range(4)]
        o += [I(f's_add_u32 s{AS.ST}, s{AS.ST}, 8192')]
    o += [I(f'{L}_nomerge1:'), I('s_waitcnt lgkmcnt(0)')]
    for t in range(4):
        o += [I(f'v_min_f32 v{TT + t}, v{ST + 2 * t}, v{PT + 2 * t}')]
    for t in range(4):
        o += [I(f'v_sub_f32 v{SC + t}, v{TT + t}, v{ST + 2 * t}'), I(f'v_sub_f32 v{WA + t}, v{TT + t}, v{PT + 2 * t}')]
    for t in range(4):
        o += [I(f'v_exp_f32 v{SC + t}, v{SC + t}'), I(f'v_exp_f32 v{WA + t}, v{WA + t}')]
    for t in range(4):
        o += [I(f'v_mul_f32 v{WA + t}, v{WA + t}, v{PT + 2 * t + 1}')]
    for t in range(4):
        o += [I(f'v_fma_f32 v{ST + 2 * t + 1}, v{ST + 2 * t + 1}, v{SC + t}, v{WA + t}'), I(f'v_mov_b32 v{ST + 2 * t}, v{TT + t}')]
    o += [I(f's_cmp_eq_u32 s{AS.ROLE}, 2'), I(f's_cbranch_scc0 {L}_nomerge2'), I('s_waitcnt vmcnt(16)')]
    for t in range(4): o += [I(f'v_min_f32 v{TT + t}, v{ST + 2 * t}, v{PS + 2 * t}')]
    for t in range(4): o += [I(f'v_sub_f32 v{TT + 4 + t}, v{TT + t}, v{ST + 2 * t}'), I(f'v_sub_f32 v{WA + t}, v{TT + t}, v{PS + 2 * t}')]
    for t in range(4): o += [I(f'v_exp_f32 v{TT + 4 + t}, v{TT + 4 + t}'), I(f'v_exp_f32 v{WA + t}, v{WA + t}')]
    for t in range(4): o += [I(f'v_mul_f32 v{WA + t}, v{WA + t}, v{PS + 2 * t + 1}'), I(f'v_mul_f32 v{SC + t}, v{SC + t}, v{TT + 4 + t}')]
    for t in range(4): o += [I(f'v_fma_f32 v{ST + 2 * t + 1}, v{ST + 2 * t + 1}, v{TT + 4 + t}, v{WA + t}')]
    o += [I(f'{L}_nomerge2:'), I('s_waitcnt vmcnt(16)')]
    o += [I(f's_cmp_eq_u32 s{AS.ROLE}, 2'), I(f's_cbranch_scc1 {L}_g1'), I('s_waitcnt vmcnt(0)'), I(f'{L}_g1:')]
    for t in range(4): o += [I(f'v_rcp_f32 v{TT + t}, v{ST + 2 * t + 1}')]
    o += [I(f's_cmp_eq_u32 s{AS.ROLE}, 1'), I(f's_cbranch_scc0 {L}_notw')]
    o += [I(f'v_mov_b32 v{GA + t}, 1.0') for t in range(4)]
    if par == 0:
        o += [I(f'v_mov_b32 v{TT + 4}, {OOB}'), I(f'v_cmp_gt_u32 vcc, 16, v{V_LANE}'), I(f'v_cndmask_b32 v{VA + 2}, v{TT + 4}, v{VA + 2}, vcc')]
        o += [I(f'buffer_store_dwordx2 {vr(ST + 2 * t, 2)}, v{VA + 2}, {sr(SRD_WS,4)}, s{AS.T1} offen offset:{128 * t} sc1') for t in range(4)]
    o += [I(f's_mov_b32 s{AS.ST}, s{AS.T2}'), I(f's_branch {L}_base'), I(f'{L}_notw:'),
          I(f's_mul_i32 s{AS.ST}, s{AS.QB}, 156'), I(f's_lshl_b32 s{AS.T0}, s{AS.H}, 3'), I(f's_add_u32 s{AS.ST}, s{AS.ST}, s{AS.T0}'),
          I(f's_lshl_b32 s{AS.ST}, s{AS.ST}, 13'), I(f's_lshl_b32 s{AS.T0}, s{AS.QH}, 12'), I(f's_add_u32 s{AS.ST}, s{AS.ST}, s{AS.T0}'),
          I(f's_add_u32 s{AS.ST}, s{AS.ST}, {AF + par * 4 * 8192}'), I(f'{L}_base:')]
    for t in range(4): o += [I(f'v_mul_f32 v{TT + t}, v{TT + t}, v{GA + t}')]
    for t in range(4): o += [I(f'v_mul_f32 v{SC + t}, v{SC + t}, v{TT + t}'), I(f'v_mul_f32 v{WA + t}, v{WA + t}, v{TT + t}')]
    send = range(8, 16) if par == 0 else range(0, 8)
    keep = range(0, 8) if par == 0 else range(8, 16)
    o += [I(f's_lshl_b32 s{AS.T0}, s{S_WAVE}, 15'), I(f'v_add_u32 v{VA}, s{AS.T0}, v{V_L16}'), I(f'v_xor_b32 v{VA + 1}, 0x10000, v{VA}')]
    B0 = X + 44
    k = 0
    for dd, d in enumerate(send):
        for t in range(4):
            x = B0 + 4 * (k % 4); k += 1
            o += [I(f'v_accvgpr_read_b32 v{x + r}, a{O(d, t) + r}') for r in range(4)]
            o += [I(f'v_mul_f32 v{x + r}, v{x + r}, v{SC + t}') for r in range(4)]
            o += [I(f'ds_write_b128 v{VA}, {vr(x, 4)} offset:{(dd * 4 + t) * 1024}')]
    o += [I('s_waitcnt lgkmcnt(0)'), I('s_barrier')]
    for variant in ('m', 'n'):
        if variant == 'm':
            o += [I(f's_cmp_eq_u32 s{AS.ROLE}, 2'), I(f's_cbranch_scc0 {L}_recv_n'), I('s_waitcnt vmcnt(0)')]
        else:
            o += [I(f'{L}_recv_n:')]
        body = []
        for rnd in range(2):
            for q in range(16):
                body += [I(f'ds_read_b128 {vr(192 + 4 * q, 4)}, v{VA + 1} offset:{(rnd * 16 + q) * 1024}', tag=('r', rnd, q))]
            for pp in range(2):
                p = rnd * 2 + pp
                for t in range(4):
                    qa, qb_ = (2 * pp) * 4 + t, (2 * pp + 1) * 4 + t
                    regs_ = [192 + 4 * qa + r for r in range(4)] + [192 + 4 * qb_ + r for r in range(4)]
                    accs = [O(keep[2 * p], t) + r for r in range(4)] + [O(keep[2 * p + 1], t) + r for r in range(4)]
                    x = B0 + 8 * (t % 2)
                    body += [I(f'v_accvgpr_read_b32 v{x + r}, a{accs[r]}') for r in range(8)]
                    body += [W_lg(('r', rnd, qb_))]
                    body += [I(f'v_fmac_f32 v{regs_[r]}, v{x + r}, v{SC + t}') for r in range(8)]
                    if variant == 'm':
                        c = 128 + 16 * p + 4 * t
                        for kk in range(4):
                            body += [I(f'v_lshlrev_b32 v{x + 2 * kk}, 16, v{c + kk}'), I(f'v_and_b32 v{x + 2 * kk + 1}, 0xffff0000, v{c + kk}')]
                        body += [I(f'v_fmac_f32 v{regs_[r]}, v{x + r}, v{WA + t}') for r in range(8)]
                    dst = 192 + 4 * qa
                    body += [I(f'v_cvt_pk_bf16_f32 v{dst + kk}, v{regs_[2*kk]}, v{regs_[2*kk+1]}') for kk in range(4)]
                    body += [I(f'buffer_store_dwordx4 {vr(dst, 4)}, v{V_L16}, {sr(SRD_WS,4)}, s{AS.ST} offen offset:{t * 1024}' + (' sc1' if variant == 'n' else ''))]
                body += [I(f's_add_u32 s{AS.ST}, s{AS.ST}, 8192')]
            if rnd == 0: body += [I('s_nop 1')]
        o += resolve_waits(body)
        if variant == 'm': o += [I(f's_branch {L}_done')]
    o += [I(f's_cmp_eq_u32 s{AS.ROLE}, 1'), I(f's_cbranch_scc0 {L}_done'),
          I('s_waitcnt vmcnt(0)'), I('s_barrier'),
          I(f'v_lshl_add_u32 v{TT}, s{S_WAVE}, 6, v{V_LANE}'), I(f'v_cmp_eq_u32 vcc, 0, v{TT}'),
          I(f's_lshr_b32 s{AS.ST}, s{AS.PID}, 5'), I(f's_lshl_b32 s{AS.ST}, s{AS.ST}, 2'), I(f's_lshl_b32 s{AS.T0}, 1, s{AS.PID}'),
          I(f'v_mov_b32 v{TT}, {OOB}'), I(f'v_cndmask_b32 v{TT}, v{TT}, 0, vcc'), I(f'v_mov_b32 v{TT + 1}, s{AS.T0}'),
          I(f'buffer_atomic_or v{TT + 1}, v{TT}, {sr(AS.DBG,4)}, s{AS.ST} offen'),
          I(f'{L}_done:')]
    return o

def att_job(ST=None):
    o = [I('ATT_job:')]
    o += [I(f's_lshr_b32 s{AS.PAR}, s{S_WAVE}, 1'), I(f's_and_b32 s{AS.QH}, s{S_WAVE}, 1'), I(f's_lshl_b32 s{AS.WL}, s{S_WAVE}, 13'),
          I(f's_lshl_b32 s{AS.T0}, s{AS.H}, 5'), I(f's_add_u32 s{AS.T0}, s{AS.T0}, s{AS.C0}'), I(f's_lshl_b32 s{AS.T0}, s{AS.T0}, 15'),
          I(f's_add_u32 s{AS.KOFF}, s{AS.T0}, s{AS.WL}'),
          I(f's_lshl_b32 s{AS.T1}, s{AS.N}, 15'), I(f's_add_u32 s{AS.KEND}, s{AS.T0}, s{AS.T1}'),
          I(f's_add_u32 s{AS.VOFF}, s{AS.KOFF}, {VF - KF}'), I(f's_add_u32 s{AS.VEND}, s{AS.KEND}, {VF - KF}'),
          I(f'v_lshlrev_b32 v{V_L16}, 4, v{V_LANE}')]
    assert KF == 0
    pro = dma_elem(0, AS.KOFF, AS.KEND)
    pro += [I(f's_lshl_b32 s{AS.T1}, s{AS.H}, 4'), I(f's_add_u32 s{AS.T1}, s{AS.T1}, s{AS.QB}'), I(f's_lshl_b32 s{AS.T1}, s{AS.T1}, 1'),
            I(f's_add_u32 s{AS.T1}, s{AS.T1}, s{AS.QH}'), I(f's_lshl_b32 s{AS.T1}, s{AS.T1}, 15'), I(f's_add_u32 s{AS.T1}, s{AS.T1}, {QF}')]
    for t in range(4):
        for s in range(8):
            pro += [I(f'buffer_load_dwordx4 {vr(Q(t, s), 4)}, v{V_L16}, {sr(SRD_WS,4)}, s{AS.T1} offen offset:{(s % 4) * 1024}', tag='q')]
            if s % 4 == 3: pro += [I(f's_add_u32 s{AS.T1}, s{AS.T1}, 4096')]
    pro += dma_elem(1, AS.KOFF, AS.KEND) + dma_elem(2, AS.VOFF, AS.VEND)
    pro = expand(pro)
    pro += [I(f's_lshl_b32 s{AS.T0}, s{AS.PAR}, 14'), I(f'v_add_u32 v{V_RD0}, s{AS.T0}, v{V_L16}'), I(f'v_add_u32 v{V_RD1}, 0x10000, v{V_RD0}'),
            I(f'v_mov_b32 v{V_NINF}, 0xff800000'),
            I(f'v_lshrrev_b32 v{V_D}, 4, v{V_LANE}'), I(f'v_lshlrev_b32 v{V_D}, 2, v{V_D}'), I(f'v_and_b32 v{V_T}, 15, v{V_LANE}'),
            I(f'v_sub_u32 v{V_D}, v{V_D}, v{V_T}'),
            I(f's_lshl_b32 s{AS.REL}, s{AS.QB}, 1'), I(f's_add_u32 s{AS.REL}, s{AS.REL}, s{AS.QH}'), I(f's_sub_u32 s{AS.REL}, s{AS.REL}, s{AS.C0}'),
            I(f's_sub_u32 s{AS.REL}, s{AS.REL}, s{AS.NU}'), I(f's_lshl_b32 s{AS.REL}, s{AS.REL}, 6'), I(f's_lshl_b32 s{AS.T0}, s{AS.PAR}, 5'),
            I(f's_sub_u32 s{AS.REL}, s{AS.REL}, s{AS.T0}'), I(f's_mov_b32 s{AS.J}, 1')]
    pro += [I(f'v_mov_b32 v{V_L + t}, 0') for t in range(4)]
    pro += [I(f'v_accvgpr_write_b32 a{r}, 0') for r in range(256)]
    pro += [I('s_waitcnt vmcnt(16)'), I('s_barrier')] + [rd(0, f, ('f', f)) for f in range(3)] + [W_lg(('f', 0))]
    side = frag_side(0, 1, 15) + place_dma(dma_elem(3, AS.KOFF, AS.KEND))
    w = weave(qk_mfmas(0, zero=True), side)
    check_m0(pro + w)
    o += resolve_waits(pro + w)
    o += [I(f's_cmp_eq_u32 s{AS.NU}, 0'), I('s_cbranch_scc0 ATT_nomask0'), I('s_nop 7')] + mask_ops(0) + [I('ATT_nomask0:'), I('s_nop 7')]
    o += rowmax_update(0, True)
    def disp(b):
        return [I(f'ATT_D{b}:'), I(f's_cmp_ge_u32 s{AS.J}, s{AS.N}'), I(f's_cbranch_scc1 ATT_F{b}')]
    def tailB(b):
        return [I(f's_add_u32 s{AS.J}, s{AS.J}, 1'), I(f's_cbranch_vccnz ATT_S{1 - b}')]
    o += disp(0) + phaseA(0) + [I(f's_cmp_ge_u32 s{AS.J}, s{AS.NU}'), I('s_cbranch_scc1 ATT_B0m')] + phaseB(0, False) + tailB(0)
    o += disp(1) + phaseA(1) + [I(f's_cmp_ge_u32 s{AS.J}, s{AS.NU}'), I('s_cbranch_scc1 ATT_B1m')] + phaseB(1, False) + tailB(1)
    o += [I('s_branch ATT_D0')]
    o += [I('ATT_B0m:')] + phaseB(0, True) + tailB(0) + [I('s_branch ATT_D1')]
    o += [I('ATT_B1m:')] + phaseB(1, True) + tailB(1) + [I('s_branch ATT_D0')]
    for b in range(2):
        o += [I(f'ATT_S{b}:'), I('s_nop 7')] + rowmax_update(b, False) + [I('s_nop 1'), I(f's_branch ATT_D{b}')]
    o += [I('ATT_F0:')] + final(0) + [I('s_branch ATT_E'), I('ATT_F1:')] + final(1)
    o += [I('ATT_E:'), I('s_nop 7'), I(f's_cmp_eq_u32 s{AS.PAR}, 0'), I('s_cbranch_scc0 ATT_E1')]
    o += epilogue(0, 'ATT_e0') + [I('s_branch ATT_Eend'), I('ATT_E1:')] + epilogue(1, 'ATT_e1') + [I('ATT_Eend:')]
    return o
```

```python
from core import *
from gemm import *

KF    = 0x0000000
VF    = 0x1000000
QF    = 0x2000000
AF    = 0x3000000
Z1F   = 0x4400000
Z2NF  = 0x4800000
STATS = 0x4C00000
GATE  = 0x4C40000
PART  = 0x5000000
PSTAT = 0x5900000
OUTP  = 0x6000000
WS_BYTES = 0x10000000

P_X, P_CKV, P_WQ, P_WUK, P_WUV, P_WO, P_BX, P_WIN, P_WSP, P_BSP, P_WOUT, P_GW, P_OUT, P_DBG, P_WS = [20 + 2 * i for i in range(15)]
SRD_A, SRD_B, SRD_WS, SRD_X = 4, 8, 12, 16

def kernel_head(name, nwg):
    return [I(f'{name}:'),
            I(f's_cmp_ge_u32 s2, {nwg}'), I(f's_cbranch_scc1 {name}_end'),
            I('s_load_dwordx16 s[20:35], s[0:1], 0'), I('s_load_dwordx8 s[36:43], s[0:1], 64'),
            I('s_load_dwordx4 s[44:47], s[0:1], 96'), I('s_load_dwordx2 s[48:49], s[0:1], 112'),
            I(f'v_lshrrev_b32 v2, 6, v0'), I(f'v_and_b32 v{V_LANE}, 63, v0'),
            I(f'v_readfirstlane_b32 s{S_WAVE}, v2'),
            I('s_waitcnt lgkmcnt(0)')] + srd(SRD_WS, P_WS, WS_BYTES)

def kernel_tail(name):
    return [I(f'{name}_end:'), I('s_endpgm')]

def srd(d, p, nbytes):
    return [I(f's_mov_b32 s{d}, s{p}'), I(f's_mov_b32 s{d+1}, s{p+1}'),
            I(f's_mov_b32 s{d+2}, {nbytes}'), I(f's_mov_b32 s{d+3}, 0x20000')]

def descriptor(name, vgpr=512, accum=256):
    return f'''.p2align 6
.amdhsa_kernel {name}
  .amdhsa_next_free_vgpr {vgpr}
  .amdhsa_next_free_sgpr 102
  .amdhsa_accum_offset {accum}
  .amdhsa_group_segment_fixed_size 0
  .amdhsa_kernarg_size 120
  .amdhsa_user_sgpr_count 2
  .amdhsa_user_sgpr_kernarg_segment_ptr 1
  .amdhsa_system_sgpr_workgroup_id_x 1
.end_amdhsa_kernel'''

def assemble_file(kernels, header='', compact=True):
    o = []
    if header: o.append(header)
    for (name, prog, grid, lds, extra) in kernels:
        o.append(f'; @launch kernel={name} grid=({grid},1,1) block=(256,1,1) lds={lds}')
    o.append('.amdgcn_target "amdgcn-amd-amdhsa--gfx950"')
    if compact: o.append(MACROS)
    o.append('.text')
    for (name, prog, grid, lds, extra) in kernels:
        o.append(f'.globl {name}'); o.append('.p2align 8'); o.append(f'.type {name},@function')
        o.append(text(prog, compact))
        if extra: o.append(extra)
    o.append('.section .rodata,"a"')
    for (name, prog, grid, lds, extra) in kernels:
        o.append(descriptor(name))
    return '\n'.join(o) + '\n'

def pack_store(src, srcp, tmp, voff, soff, imm, scale=None, flags='', tag='st'):
    o = []
    s = list(src)
    if srcp == 'a':
        for k in range(8): o.append(I(f'v_accvgpr_read_b32 v{tmp + 4 + k}, a{src[k]}'))
        s = [tmp + 4 + k for k in range(8)]
    if scale is not None:
        for k in range(8):
            o.append(I(f'v_mul_f32 v{tmp + 4 + k}, {scale}, v{s[k]}'))
        s = [tmp + 4 + k for k in range(8)]
    for k in range(4): o.append(I(f'v_cvt_pk_bf16_f32 v{tmp + k}, v{s[2*k]}, v{s[2*k+1]}'))
    o.append(I(f'buffer_store_dwordx4 {vr(tmp, 4)}, v{voff}, {sr(SRD_WS, 4)}, s{soff} offen offset:{imm} {flags}'.rstrip(), tag=tag))
    return o

STAMP = 0x7000000
class Stamps:
    def __init__(self, enable, base_sgpr=80, only=None):
        self.en = enable; self.n = 0; self.b = base_sgpr; self.only = only
    def mark(self, name=None):
        if not self.en: return []
        if self.only is None and name is not None and name.startswith('x'): return []
        if self.only is not None and name not in self.only: return []
        r = self.b + 2 * self.n; self.n += 1
        assert r + 1 < 100
        return [I(f's_memtime s[{r}:{r+1}]')]
    def rt(self):
        if not self.en: return []
        r = self.b + 2 * self.n; self.n += 1
        return [I(f's_memrealtime s[{r}:{r+1}]')]
    def dump(self, kidx=0):
        if not self.en: return []
        o = [I('s_waitcnt lgkmcnt(0)'), I(f's_lshl_b32 s100, s2, 2'), I(f's_add_u32 s100, s100, s{S_WAVE}'), I('s_lshl_b32 s100, s100, 6'),
             I(f's_add_u32 s100, s100, {STAMP + kidx * 0x10000}'), I('v_mov_b32 v2, 0')]
        for i in range(self.n):
            o += [I(f'v_mov_b32 v3, s{self.b + 2 * i}'), I(f'buffer_store_dword v3, v2, {sr(SRD_WS,4)}, s100 offen offset:{4 * i}'), I('s_nop 1')]
        o += [I('s_waitcnt vmcnt(0)')]
        return o
```

```python
import re

class I:
    __slots__ = ('t', 'kind', 'tag', 'wait', 'pos', 'cost', 'm0', 'pin')
    def __init__(self, t, kind=None, tag=None, wait=None, pos=None):
        self.t = t
        self.kind = kind or classify(t)
        self.tag = tag
        self.wait = wait
        self.pos = pos
        self.cost = vcost(self)
        self.m0 = None
        self.pin = False
    def __repr__(self): return self.t

TRANS = ('v_exp_f32', 'v_log_f32', 'v_rcp_f32', 'v_rsq_f32', 'v_sqrt_f32', 'v_sin_f32', 'v_cos_f32')
def classify(t):
    op = t.split()[0]
    if op.endswith(':'): return 'label'
    if op.startswith('v_mfma'): return 'mfma'
    if op.startswith('ds_'): return 'ds'
    if op.startswith('buffer_') or op.startswith('global_'): return 'vmem'
    if op in TRANS: return 'trans'
    if op.startswith('v_'): return 'valu'
    if op == 's_waitcnt': return 'wait'
    if op == 's_barrier': return 'bar'
    if op.startswith('s_cbranch') or op == 's_branch' or op == 's_setpc_b64' or op == 's_endpgm': return 'branch'
    if op.startswith('s_load') or op in ('s_memtime', 's_memrealtime'): return 'smem'
    if op.startswith('s_'): return 'salu'
    if op.startswith('.') or op.startswith(';'): return 'dir'
    if op == 'WAIT': return 'pwait'
    raise ValueError('unknown instr ' + t)
def vcost(i):
    return {'valu': 4, 'trans': 8, 'ds': 4, 'vmem': 4, 'mfma': 8}.get(i.kind, 0)

class Grp(I):
    __slots__ = ('items',)
    def __init__(self, items):
        self.t = '; group'; self.kind = 'group'; self.tag = None; self.wait = None; self.pos = None; self.m0 = None; self.pin = False
        self.items = items; self.cost = sum(i.cost for i in items)

def expand(l):
    o = []
    for i in l:
        if i.kind == 'group': o += i.items
        else: o.append(i)
    return o

def W_vm(tag):
    return I('WAIT vm', 'pwait', wait=('vm', tag))
def W_lg(tag):
    return I('WAIT lgkm', 'pwait', wait=('lgkm', tag))

def vr(a, n=1, p='v'):
    return f'{p}{a}' if n == 1 else f'{p}[{a}:{a+n-1}]'
def ar(a, n=1): return vr(a, n, 'a')
def sr(a, n=1): return vr(a, n, 's')

def weave(mf, side, budget=8, maxn=3):
    pins = sorted([x for x in side if x.pin], key=lambda x: x.pos)
    side = sorted([x for x in side if not x.pin], key=lambda x: x.pos)
    out = []
    k = 0
    while k < len(side) and side[k].pos < 0:
        out.append(side[k]); k += 1
    n = len(mf)
    cntof = lambda x: len(x.items) if x.kind == 'group' else 1
    for g in range(n):
        out.append(mf[g])
        pg = [x for x in pins if int(x.pos) == g]
        used = sum(x.cost for x in pg); cnt = sum(cntof(x) for x in pg)
        out += [x for x in pg if x.pos - g < 0.5]
        while k < len(side) and side[k].pos < g + 1:
            c = side[k].cost
            if g < n - 1 and (used + c > budget or cnt + cntof(side[k]) > maxn) and cnt > 0:
                break
            out.append(side[k]); used += c; cnt += cntof(side[k]); k += 1
        out += [x for x in pg if x.pos - g >= 0.5]
    out += side[k:]
    assert all(0 <= int(x.pos) < n for x in pins)
    return expand(out)

def spread(items, p0, p1):
    n = len(items)
    for i, it in enumerate(items):
        it.pos = p0 + (p1 - p0) * i / max(n, 1)
    return items

def resolve_waits(prog, vm_out=None, lg_out=None):
    vm = list(vm_out or []); lg = list(lg_out or [])
    out = []
    for ins in prog:
        if ins.kind == 'vmem' and not ins.t.startswith('buffer_inv') and not ins.t.startswith('buffer_wbl2'):
            vm.append(ins.tag)
        elif ins.kind == 'vmem':
            vm.append(ins.tag)
        elif ins.kind == 'ds':
            lg.append(ins.tag)
        elif ins.kind == 'smem':
            lg.append('__smem__')
        elif ins.kind == 'wait':
            m = re.search(r'vmcnt\((\d+)\)', ins.t)
            if m:
                n = int(m.group(1)); vm = vm[len(vm)-n:] if n < len(vm) else vm
                if n == 0: vm = []
            m = re.search(r'lgkmcnt\((\d+)\)', ins.t)
            if m:
                n = int(m.group(1)); lg = lg[len(lg)-n:] if n < len(lg) else lg
                if n == 0: lg = []
        elif ins.kind == 'pwait':
            which, tags = ins.wait
            if not isinstance(tags, (list, set, tuple)) or isinstance(tags, tuple): tags = [tags]
            q = vm if which == 'vm' else lg
            last = -1
            for i, t in enumerate(q):
                if t in tags: last = i
            if last < 0:
                continue
            n = len(q) - 1 - last
            if which == 'lgkm' and '__smem__' in q: n = 0
            lim = 63 if which == 'vm' else 15
            n = min(n, lim)
            name = 'vmcnt' if which == 'vm' else 'lgkmcnt'
            w = I(f's_waitcnt {name}({n})')
            out.append(w)
            if which == 'vm': vm = q[len(q)-n:] if n else []
            else: lg = q[len(q)-n:] if n else []
            continue
        out.append(ins)
    return out

REG = re.compile(r'\b([vas])(\d+)\b|\b([vas])\[(\d+):(\d+)\]')
def regs(tok):
    s = set()
    for m in REG.finditer(tok):
        if m.group(1): s.add((m.group(1), int(m.group(2))))
        else:
            for r in range(int(m.group(4)), int(m.group(5)) + 1): s.add((m.group(3), r))
    for nm in ('vcc', 'exec', 'm0', 'scc'):
        if re.search(r'\b' + nm + r'(_lo|_hi)?\b', tok): s.add((nm, 0))
    return s

def rw(ins):
    t = ins.t.split(';')[0].strip()
    parts = t.split(None, 1)
    op = parts[0]
    ops = [o.strip() for o in parts[1].split(',')] if len(parts) > 1 else []
    k = ins.kind
    if k == 'mfma':
        return regs(ops[0]), regs(ops[1]) | regs(ops[2]) | regs(ops[3]), regs(ops[3])
    if k in ('valu', 'trans'):
        w = regs(ops[0]); r = set()
        for o in ops[1:]: r |= regs(o)
        if op.startswith('v_cmp'):
            pass
        if op.startswith(('v_fmac', 'v_permlane', 'v_dot2c', 'v_writelane')): r |= w
        if op.startswith('v_permlane') and 'swap' in op: w |= regs(ops[1])
        if op.startswith(('v_add_co', 'v_sub_co', 'v_addc_co', 'v_subb_co')): w |= regs(ops[1])
        if 'dpp' in op or 'row_' in t or 'quad_perm' in t: r |= w
        if op.startswith('v_cndmask') and len(ops) == 3: r.add(('vcc', 0))
        return w, r, set()
    if k == 'ds':
        if op.startswith('ds_read') or op.startswith('ds_bpermute') or op.startswith('ds_swizzle') or op.startswith('ds_permute'):
            r = set()
            for o in ops[1:]: r |= regs(o)
            return regs(ops[0]), r, set()
        r = set()
        for o in ops: r |= regs(o)
        return set(), r, set()
    if k == 'vmem':
        if op.startswith('buffer_load') and not re.search(r'\blds\b', t):
            r = set()
            for o in ops[1:]: r |= regs(o)
            return regs(ops[0]), r, set()
        if op.startswith('global_load') and 'lds' not in op:
            r = set()
            for o in ops[1:]: r |= regs(o)
            return regs(ops[0]), r, set()
        r = set()
        for o in ops: r |= regs(o)
        if re.search(r'\blds\b', t) or 'lds' in op: r.add(('m0', 0))
        w = set()
        if 'atomic' in op and 'sc0' in t: w = regs(ops[0])
        return w, r, set()
    if k in ('salu', 'smem'):
        if op.startswith('s_cmp') or op.startswith('s_bitcmp'):
            r = set()
            for o in ops: r |= regs(o)
            return {('scc', 0)}, r, set()
        if op in ('s_nop', 's_setprio', 's_sleep'): return set(), set(), set()
        w = regs(ops[0]) if ops else set(); r = set()
        for o in ops[1:]: r |= regs(o)
        if 'saveexec' in op: w.add(('exec', 0))
        return w, r, set()
    return set(), set(), set()

def states(ins):
    if ins.kind in ('label', 'dir', 'pwait'): return 0
    if ins.t.startswith('s_nop'):
        return int(ins.t.split()[1], 0) + 1
    return 1

def is_wide_store(ins):
    return ins.kind == 'vmem' and re.match(r'(buffer|global)_store_dwordx[34]', ins.t) is not None

def hazard_need(p, c, pw, pr, pc, cw, cr, cc):
    need = 0
    pk, ck = p.kind, c.kind
    pv = pk in ('valu', 'trans'); cv = ck in ('valu', 'trans')
    vg = lambda s: {x for x in s if x[0] in 'va'}
    sg = lambda s: {x for x in s if x[0] in ('s', 'vcc')}
    if pk == 'mfma':
        passes = 8 if '32x32' in p.t else 4
        d = pw
        if ck == 'mfma':
            ab = cr - cc | (regs(c.t.split(',')[1]) | regs(c.t.split(',')[2]))
            if d & (regs(c.t.split(',')[1]) | regs(c.t.split(',')[2])): need = max(need, passes + 4)
            if d & cc and cc != d: need = max(need, passes + 2)
            if d & cw and cc != d and not (d & cc): need = max(need, passes + 2)
        elif cv:
            if d & (cr | cw): need = max(need, passes + 4)
            if pc & cw: need = max(need, passes - 1)
        elif ck in ('ds', 'vmem'):
            if d & (cr | cw): need = max(need, passes + 4)
    if pv:
        if ck == 'mfma' and vg(pw) & cr: need = max(need, 2)
        if pk == 'trans' and ck == 'valu' and pw & cr: need = max(need, 1)
        if pk == 'trans' and ck in ('ds', 'vmem', 'mfma') and pw & cr: need = max(need, 2 if ck == 'mfma' else 1)
        if cv and sg(pw) & cr: need = max(need, 2)
        if ck == 'vmem' and sg(pw) & cr: need = max(need, 5)
        if cv and c.t.startswith(('v_readfirstlane', 'v_readlane')) and vg(pw) & cr: need = max(need, 1)
        if cv and (c.t.startswith('v_permlane') or '_dpp' in c.t or 'row_' in c.t or 'quad_perm' in c.t) and vg(pw) & (cr | cw): need = max(need, 2)
        if ('exec', 0) in pw and (cv or ck == 'mfma'): need = max(need, 5)
        if c.kind == 'salu' and sg(pw) & cr: need = max(need, 1)
    if pk == 'salu':
        if ('m0', 0) in pw and ('m0', 0) in cr and ck in ('vmem', 'ds'): need = max(need, 1)
    if is_wide_store(p):
        data = regs(p.t.split(None, 1)[1].split(',')[0]) if p.t.startswith('buffer') else regs(p.t.split(None, 1)[1].split(',')[1])
        if data & cw: need = max(need, 2)
    if pk == 'ds' and p.t.startswith('ds_write_b128'):
        pass
    return need

def fix_hazards(prog, verbose=False, window=24):
    out = []
    info = []
    nins = 0
    for ins in prog:
        if ins.kind in ('label', 'dir'):
            out.append(ins); info.append(None); continue
        cw, cr, cc = rw(ins)
        need_pad = 0
        dist = 0
        i = len(out) - 1
        while i >= 0 and dist < window:
            p = out[i]
            if info[i] is not None:
                n = hazard_need(p, ins, *info[i], cw, cr, cc)
                if n > dist: need_pad = max(need_pad, n - dist)
                dist += states(p)
            i -= 1
        if need_pad:
            if verbose: print('pad', need_pad, 'before', ins.t)
            nins += 1
            while need_pad > 0:
                k = min(need_pad, 16)
                nop = I(f's_nop {k-1}'); out.append(nop); info.append(({}, {}, {}))
                info[-1] = (set(), set(), set())
                need_pad -= k
        out.append(ins); info.append((cw, cr, cc))
    return out

def check_wrap(body):
    a = fix_hazards(body + body)
    if len(a) != 2 * len(body):
        extra = [x.t for x in a]
        raise AssertionError('loop back-edge hazard needs padding')

MACROS = r"""
.macro mA d,a,b
v_mfma_f32_16x16x32_bf16 a[\d:\d+3], v[\a:\a+3], v[\b:\b+3], a[\d:\d+3]
.endm
.macro mV d,a,b
v_mfma_f32_16x16x32_bf16 v[\d:\d+3], v[\a:\a+3], v[\b:\b+3], v[\d:\d+3]
.endm
.macro mAz d,a,b
v_mfma_f32_16x16x32_bf16 a[\d:\d+3], v[\a:\a+3], v[\b:\b+3], 0
.endm
.macro mVz d,a,b
v_mfma_f32_16x16x32_bf16 v[\d:\d+3], v[\a:\a+3], v[\b:\b+3], 0
.endm
.macro rB d,a,o
ds_read_b128 v[\d:\d+3], v\a offset:\o
.endm
.macro rT d,a,o
ds_read_b64_tr_b16 v[\d:\d+1], v\a offset:\o
.endm
.macro aR d,a
v_accvgpr_read_b32 v\d, a\a
.endm
.macro aW d,a
v_accvgpr_write_b32 a\d, v\a
.endm
.macro cP d,a,b
v_cvt_pk_bf16_f32 v\d, v\a, v\b
.endm
.macro dL v,s,f,o
buffer_load_dwordx4 v\v, s[\s:\s+3], s\f offen offset:\o lds
.endm
"""
_CMP = [
    (re.compile(r'^v_mfma_f32_16x16x32_bf16 ([av])\[(\d+):\d+\], v\[(\d+):\d+\], v\[(\d+):\d+\], ([av])\[(\d+):\d+\]$'),
     lambda m: (f'm{m[1].upper()} {m[2]},{m[3]},{m[4]}' if (m[1] == m[5] and m[2] == m[6]) else None)),
    (re.compile(r'^v_mfma_f32_16x16x32_bf16 ([av])\[(\d+):\d+\], v\[(\d+):\d+\], v\[(\d+):\d+\], 0$'),
     lambda m: f'm{m[1].upper()}z {m[2]},{m[3]},{m[4]}'),
    (re.compile(r'^ds_read_b128 v\[(\d+):\d+\], v(\d+) offset:(\d+)$'), lambda m: f'rB {m[1]},{m[2]},{m[3]}'),
    (re.compile(r'^ds_read_b64_tr_b16 v\[(\d+):\d+\], v(\d+) offset:(\d+)$'), lambda m: f'rT {m[1]},{m[2]},{m[3]}'),
    (re.compile(r'^v_accvgpr_read_b32 v(\d+), a(\d+)$'), lambda m: f'aR {m[1]},{m[2]}'),
    (re.compile(r'^v_accvgpr_write_b32 a(\d+), v(\d+)$'), lambda m: f'aW {m[1]},{m[2]}'),
    (re.compile(r'^v_cvt_pk_bf16_f32 v(\d+), v(\d+), v(\d+)$'), lambda m: f'cP {m[1]},{m[2]},{m[3]}'),
    (re.compile(r'^buffer_load_dwordx4 v(\d+), s\[(\d+):\d+\], s(\d+) offen offset:(\d+) lds$'), lambda m: f'dL {m[1]},{m[2]},{m[3]},{m[4]}'),
]
def text(prog, compact=True):
    o = []
    for i in prog:
        if i.kind == 'pwait': raise ValueError('unresolved wait')
        t = i.t
        if compact:
            if i.kind == 'dir' and t.startswith(';'): continue
            for rx, f in _CMP:
                m = rx.match(t)
                if m:
                    r = f(m)
                    if r: t = r; break
            o.append(t)
        else:
            o.append(t if i.kind in ('label', 'dir') else '  ' + t)
    return '\n'.join(o)

def roll(steps, U, label, cnt_sreg, min_iters=2):
    txt = [tuple(i.t for i in s) for s in steps]
    n = len(steps)
    best = (0, 0)
    for a in range(n):
        k = 1
        while a + (k + 1) * U <= n and txt[a + k * U: a + (k + 1) * U] == txt[a: a + U]: k += 1
        if a + U <= n and k > best[0]: best = (k, a)
    k, a = best
    out = []
    if k < min_iters:
        for s in steps: out += s
        return out
    for s in steps[:a]: out += s
    body = []
    for s in steps[a:a + U]: body += s
    body = fix_hazards(body)
    tail = [I(f's_sub_u32 s{cnt_sreg}, s{cnt_sreg}, 1'), I(f's_cmp_lg_u32 s{cnt_sreg}, 0'), I(f's_cbranch_scc1 {label}')]
    check_wrap(body + tail)
    out.append(I(f's_mov_b32 s{cnt_sreg}, {k}'))
    out.append(I(f'{label}:'))
    out += body + tail
    for s in steps[a + k * U:]: out += s
    return out

def check_m0(prog):
    last = None
    for i in prog:
        if i.kind == 'salu' and re.match(r's_\w+ m0,', i.t): last = i.t
        if i.m0 is not None and i.m0 != last:
            raise AssertionError(f'm0 mismatch at {i.t}: expected {i.m0} have {last}')
```

```python
from core import *

class Alloc:
    def __init__(self, lo, hi): self.p = lo; self.hi = hi
    def get(self, n=1, align=1):
        self.p = (self.p + align - 1) // align * align
        r = self.p; self.p += n
        assert self.p <= self.hi, 'out of regs'
        return r

V_LANE = 1
S_WAVE = 3

class OpBase:
    gran = 1
    def dma_all(self, gi):
        slot = self.slots[(gi + self.slot0) % len(self.slots)]
        dyn = getattr(self, 'dyn', False)
        out = []
        for q in range(self.nq):
            if q % 4 == 0:
                if dyn:
                    out.append(Grp([I(f's_add_u32 s100, s{self.s_wl}, s{self.s_ws}'), I(f's_add_u32 m0, s100, {self.lo + q * 1024}')])); m0t = out[-1].items[1].t
                else:
                    out.append(I(f's_add_u32 m0, s{self.s_wl}, {slot + q * 1024}')); m0t = out[-1].t
            out.append(I(f'buffer_load_dwordx4 v{self.voff(q)}, {sr(self.srd,4)}, s{self.s_off} offen offset:{(q % 4) * 1024} lds',
                         tag=(self.name, gi)))
            out[-1].m0 = m0t
        out.append(I(f's_add_u32 s{self.s_off}, s{self.s_off}, {self.adv}'))
        if dyn:
            span = len(self.slots) * self.gbytes
            out.append(Grp([I(f's_add_u32 s{self.s_ws}, s{self.s_ws}, {self.gbytes}'), I(f's_cmp_lt_u32 s{self.s_ws}, {span}'),
                            I(f's_cselect_b32 s{self.s_ws}, s{self.s_ws}, 0')]))
        return out

class OpR(OpBase):
    gran = 2
    def __init__(self, name, srd, stride, rows_wg, nfr, slots, va, sa, perm=False, slot0=0, dyn=False):
        self.name, self.srd, self.stride, self.rows, self.nfr, self.slots, self.perm = name, srd, stride, rows_wg, nfr, slots, perm
        self.dyn = dyn
        self.slot0 = slot0
        self.nq = rows_wg // 32
        self.lo = min(slots)
        self.nwin = (max(slots) + rows_wg * 128 - 1 - self.lo) // 65536 + 1
        if dyn:
            self.nwin = 1
            self.s_rs = sa.get(); self.s_ws = sa.get()
            self.v_b = va.get(1)
        self.v_off = va.get(self.nq); self.v_rd = va.get(2 * self.nwin)
        self.s_wl = sa.get(); self.s_off = sa.get()
        self.adv = 128
        self.gbytes = rows_wg * 128
    def voff(self, q): return self.v_off + q
    def setup(self, tmp, wave_row0):
        t0, t1, t2 = tmp, tmp + 1, tmp + 2
        o = []
        rpw = self.rows // 4
        o += [I(f's_mul_i32 s{self.s_wl}, s{S_WAVE}, {rpw * self.stride}'),
              I(f's_add_u32 s{self.s_off}, s{self.s_off}, s{self.s_wl}'),
              I(f's_mul_i32 s{self.s_wl}, s{S_WAVE}, {rpw * 128}')]
        o += [I(f'v_lshrrev_b32 v{t0}, 3, v{V_LANE}'),
              I(f'v_mul_u32_u24 v{t0}, {self.stride}, v{t0}'),
              I(f'v_bfe_u32 v{t2}, v{V_LANE}, 4, {1 if self.perm else 2}'),
              I(f'v_and_b32 v{t1}, 7, v{V_LANE}'), I(f'v_xor_b32 v{t1}, v{t1}, v{t2}'),
              I(f'v_lshl_add_u32 v{t0}, v{t1}, 4, v{t0}')]
        assert self.stride % 128 == 0
        for q in range(self.nq):
            x = ((q & 3) << 1) if self.perm else 4 * (q & 1)
            c = 8 * q * self.stride - 1024 * (q & 3)
            assert c >= 0
            d = self.v_off + q
            if x == 0: o += [I(f'v_add_u32 v{d}, {c}, v{t0}')]
            elif not self.perm and q >= 2: o += [I(f'v_add_u32 v{d}, {c - (8 * self.stride - 1024)}, v{self.v_off + 1}')]
            else: o += [I(f'v_xor_b32 v{d}, {x << 4}, v{t0}'), I(f'v_add_u32 v{d}, {c}, v{d}')]
        if self.dyn: o += [I(f's_mov_b32 s{self.s_ws}, {self.slots[self.slot0] - self.lo}')]
        self._ndma = len(o)
        o += [I(f'v_and_b32 v{t0}, 15, v{V_LANE}'),
              I(f'v_lshrrev_b32 v{t1}, 1, v{t0}'),
              I(f'v_lshrrev_b32 v{t2}, 4, v{V_LANE}'),
              I(f'v_xor_b32 v{t1}, v{t1}, v{t2}')]
        if self.perm:
            o += [I(f'v_lshrrev_b32 v{t2}, 2, v{t0}'), I(f'v_lshlrev_b32 v{t2}, 3, v{t2}'),
                  I(f'v_and_b32 v{t0}, 3, v{t0}'), I(f'v_add_u32 v{t0}, v{t0}, v{t2}')]
        o += [I(f'v_add_u32 v{t0}, s{wave_row0}, v{t0}'),
              I(f'v_lshlrev_b32 v{t0}, 7, v{t0}'),
              I(f'v_lshl_add_u32 v{self.v_rd}, v{t1}, 4, v{t0}')]
        if self.lo:
            o += [I(f'v_add_u32 v{self.v_rd}, {self.lo}, v{self.v_rd}')]
        if self.dyn:
            o += [I(f'v_mov_b32 v{self.v_b}, v{self.v_rd}'), I(f's_mov_b32 s{self.s_rs}, {self.slots[self.slot0] - self.lo}')]
            if self.slots[self.slot0] != self.lo: o += [I(f'v_add_u32 v{self.v_rd}, s{self.s_rs}, v{self.v_b}')]
        o += [I(f'v_xor_b32 v{self.v_rd + 1}, 64, v{self.v_rd}')]
        for w in range(1, self.nwin):
            o += [I(f'v_add_u32 v{self.v_rd + 2 * w}, {65536 * w}, v{self.v_rd}'),
                  I(f'v_add_u32 v{self.v_rd + 2 * w + 1}, {65536 * w}, v{self.v_rd + 1}')]
        return o
    def reads(self, t, dst):
        gi = t // 2; ks = t % 2
        if self.dyn:
            o = []
            for i in range(self.nfr):
                o.append(I(f'ds_read_b128 {vr(dst + 4 * i, 4)}, v{self.v_rd + ks} offset:{16 * i * 128}', tag=('rd', t)))
            if ks == 1:
                span = len(self.slots) * self.gbytes
                o += [Grp([I(f's_add_u32 s{self.s_rs}, s{self.s_rs}, {self.gbytes}'), I(f's_cmp_lt_u32 s{self.s_rs}, {span}'),
                           I(f's_cselect_b32 s{self.s_rs}, s{self.s_rs}, 0')]),
                      I(f'v_add_u32 v{self.v_rd}, s{self.s_rs}, v{self.v_b}'), I(f'v_xor_b32 v{self.v_rd + 1}, 64, v{self.v_rd}')]
            return o
        slot = self.slots[(gi + self.slot0) % len(self.slots)] - self.lo
        win = slot // 65536; slot -= win * 65536
        o = []
        for i in range(self.nfr):
            ro = ((i // 2) * 32 + (i % 2) * 4) if self.perm else 16 * i
            off = slot + ro * 128
            assert off < 65536
            o.append(I(f'ds_read_b128 {vr(dst + 4 * i, 4)}, v{self.v_rd + 2 * win + ks} offset:{off}', tag=('rd', t)))
        return o

class OpT(OpBase):
    gran = 1
    def __init__(self, name, srd, stride, RB, nfr, slots, va, sa, cnat=False, slot0=0):
        self.name, self.srd, self.stride, self.RB, self.nfr, self.slots, self.cnat = name, srd, stride, RB, nfr, slots, cnat
        self.slot0 = slot0
        self.nq = 32 * RB // 1024 // 4
        self.v_off = va.get(self.nq); self.v_rd = va.get(nfr)
        self.s_wl = sa.get(); self.s_off = sa.get()
        self.adv = 32 * stride
        self.gbytes = 32 * RB
    def voff(self, q): return self.v_off + q
    def setup(self, tmp, wave_p0):
        t0, t1, t2 = tmp, tmp + 1, tmp + 2
        RB = self.RB; CR = RB // 16; RI = 1024 // RB
        lgCR = CR.bit_length() - 1
        o = [I(f's_mul_i32 s{self.s_wl}, s{S_WAVE}, {8 * self.stride}'),
             I(f's_add_u32 s{self.s_off}, s{self.s_off}, s{self.s_wl}'),
             I(f's_mul_i32 s{self.s_wl}, s{S_WAVE}, {8 * RB}')]
        o += [I(f'v_lshrrev_b32 v{t0}, {lgCR}, v{V_LANE}'),
              I(f'v_and_b32 v{t1}, {CR - 1}, v{V_LANE}'),
              I(f'v_lshlrev_b32 v{t2}, 1, v{t0}'), I(f'v_xor_b32 v{t1}, v{t1}, v{t2}')]
        if not self.cnat:
            o += [I(f's_and_b32 s101, s{S_WAVE}, 1'), I(f's_lshl_b32 s101, s101, 3'), I(f'v_xor_b32 v{t1}, s101, v{t1}')]
        o += [I(f'v_lshlrev_b32 v{t1}, 4, v{t1}'), I(f'v_mul_u32_u24 v{t0}, {self.stride}, v{t0}')]
        for q in range(self.nq):
            d = self.v_off + q
            fq = (RI * q) & (7 if self.cnat else 3)
            c = RI * q * self.stride - 1024 * (q & 3)
            assert c >= 0
            if fq: o += [I(f'v_xor_b32 v{d}, {fq << 5}, v{t1}'), I(f'v_add_u32 v{d}, v{d}, v{t0}')]
            else: o += [I(f'v_add_u32 v{d}, v{t1}, v{t0}')]
            if c: o += [I(f'v_add_u32 v{d}, {c}, v{d}')]
        self._ndma = len(o)
        o += [I(f'v_lshrrev_b32 v{t0}, 4, v{V_LANE}'),
              I(f'v_bfe_u32 v{t1}, v{V_LANE}, 2, 2'),
              I(f'v_lshl_add_u32 v{t2}, v{t0}, {2 if self.cnat else 3}, v{t1}'),
              I(f'v_and_b32 v{t0}, 1, v{t0}'),
              I(f'v_lshl_add_u32 v{t0}, v{t0}, 2, v{t1}'),
              I(f'v_lshlrev_b32 v{t0}, 5, v{t0}'),
              I(f'v_mul_u32_u24 v{t2}, {RB}, v{t2}'),
              I(f'v_and_b32 v{t1}, 3, v{V_LANE}'),
              I(f'v_lshl_add_u32 v{t2}, v{t1}, 3, v{t2}'),
              I(f'v_add_u32 v{t2}, {min(self.slots)}, v{t2}'),
              I(f's_lshl_b32 s101, s{wave_p0}, 5')]
        for j in range(self.nfr):
            d = self.v_rd + j
            o += [Grp([I(f'v_xad_u32 v{d}, s101, v{t0}, v{t2}'), I(f's_add_u32 s101, s101, 32')])]
        return o
    def reads(self, t, dst):
        slot = self.slots[(t + self.slot0) % len(self.slots)] - min(self.slots)
        o = []
        sec = (16 if self.cnat else 4) * self.RB
        for j in range(self.nfr):
            assert slot + sec < 65536
            o.append(I(f'ds_read_b64_tr_b16 {vr(dst + 4 * j, 2)}, v{self.v_rd + j} offset:{slot}', tag=('rd', t)))
            o.append(I(f'ds_read_b64_tr_b16 {vr(dst + 4 * j + 2, 2)}, v{self.v_rd + j} offset:{slot + sec}', tag=('rd', t)))
        return o

class OpF(OpBase):
    def __init__(self, name, srd, nwg, nfr, slots, va, sa, gran=1, adv=None, slot0=0):
        self.name, self.srd, self.nwg, self.nfr, self.slots, self.gran = name, srd, nwg, nfr, slots, gran
        self.slot0 = slot0
        self.nq = nwg * gran // 4
        self.step_adv = adv if adv is not None else nwg * 1024
        self.adv = self.step_adv * gran
        self.v_off = va.get(1 if (gran == 1 or self.step_adv == nwg * 1024) else self.nq); self.v_rd = va.get(1)
        self.s_wl = sa.get(); self.s_off = sa.get()
        self.gbytes = nwg * gran * 1024
        assert gran == 1 or self.step_adv == nwg * 1024
        assert self.nq <= 4, 'more than 4 per wave needs soffset bump'
    def voff(self, q): return self.v_off
    def setup(self, tmp, wave_f0):
        o = [I(f's_mul_i32 s{self.s_wl}, s{S_WAVE}, {self.nq * 1024}'),
             I(f's_add_u32 s{self.s_off}, s{self.s_off}, s{self.s_wl}'),
             I(f'v_lshlrev_b32 v{self.v_off}, 4, v{V_LANE}'),
             I(f's_lshl_b32 s101, s{wave_f0}, 10'),
             I(f's_add_u32 s101, s101, {min(self.slots)}'),
             I(f'v_add_u32 v{self.v_rd}, s101, v{self.v_off}')]
        return o
    def reads(self, t, dst):
        gi = t // self.gran; ks = t % self.gran
        slot = self.slots[(gi + self.slot0) % len(self.slots)] - min(self.slots)
        o = []
        for i in range(self.nfr):
            off = slot + (ks * self.nwg + i) * 1024
            assert off < 65536
            o.append(I(f'ds_read_b128 {vr(dst + 4 * i, 4)}, v{self.v_rd} offset:{off}', tag=('rd', t)))
        return o

def initial_dmas(ops, n, skip=()):
    pro = []
    mx = max(len(op.slots) * op.gran for op in ops)
    for t in range(mx):
        for op in sorted(ops, key=lambda o: -o.gran):
            if t % op.gran == 0:
                gi = t // op.gran
                if gi < len(op.slots) and gi * op.gran < n and (op.name, gi) not in skip:
                    pro += op.dma_all(gi)
    return pro

def gemm_steps(opM, opN, n, fM, fN, acc, accp='a', bg=None, sync_pos=0.80, first_zero=True, issued=None, tail_bar=False, rd_end=None, dma_end=0.95):
    ops = (opM, opN)
    ngr = {op.name: (n + op.gran - 1) // op.gran for op in ops}
    pro = expand(initial_dmas(ops, n, issued or ()))
    need = lambda t: [(op.name, t // op.gran) for op in ops]
    pro += [W_vm(need(0) + need(1)), I('s_barrier')]
    pro += expand(opM.reads(0, fM[0]) + opN.reads(0, fN[0]))
    pro += [I('s_waitcnt lgkmcnt(0)'), I('s_barrier')]
    steps = []
    pend = {}
    nm = opM.nfr * opN.nfr
    for t in range(n):
        mf = []
        for i in range(opM.nfr):
            for j in range(opN.nfr):
                d = vr(acc(i, j), 4, accp)
                c = '0' if (t == 0 and first_zero) else d
                mf.append(I(f'v_mfma_f32_16x16x32_bf16 {d}, {vr(fM[t % 2] + 4 * i, 4)}, {vr(fN[t % 2] + 4 * j, 4)}, {c}'))
        side = []
        dm = []
        for op in sorted(ops, key=lambda o: -o.gran):
            if pend.get(op.name): dm += pend.pop(op.name)
            if (t + 1) % op.gran == 0:
                gi = t // op.gran + len(op.slots)
                if gi < ngr[op.name]:
                    d = op.dma_all(gi)
                    if op.gran == 2 and len(op.slots) >= 3 and op.nq == 8:
                        dm += d[:5]; pend[op.name] = d[5:]
                    else: dm += d
        rd = []
        if t + 1 < n:
            a = opM.reads(t + 1, fM[(t + 1) % 2]); b = opN.reads(t + 1, fN[(t + 1) % 2])
            rd = a + b
        sp = sync_pos * nm
        side += spread(rd, 0, rd_end if rd_end is not None else sp - min(6, 0.2 * nm))
        side += spread(dm, 0, dma_end * nm)
        if t + 1 < n:
            s = [I('s_waitcnt lgkmcnt(0)')]
            if t + 2 < n: s += [W_vm(need(t + 2)), I('s_barrier')]
            elif tail_bar: s += [I('s_barrier')]
            for x in s: x.pos = sp
            side += s
        if bg: side += bg(t)
        steps.append(weave(mf, side))
    return pro, steps

def chop(stream, t0, t1, nm, lo=0.0, hi=1.0):
    tot = sum(max(i.cost, 1) for i in stream)
    nst = t1 - t0
    out = {t: [] for t in range(t0, t1)}
    acc = 0
    for i in stream:
        f = acc / tot * nst
        t = min(int(f), nst - 1)
        i.pos = (lo + (hi - lo) * (f - t)) * nm
        out[t0 + t].append(i)
        acc += max(i.cost, 1)
    return out

class BG:
    def __init__(self): self.d = {}
    def add(self, dd):
        for t, l in dd.items(): self.d.setdefault(t, []).extend(l)
    def at(self, t, lst, p0, p1):
        self.d.setdefault(t, []).extend(spread(lst, p0, p1))
    def __call__(self, t): return self.d.get(t, [])

def finish_multi(parts):
    flat = []
    for k, p in enumerate(parts):
        flat.append(I(f'; part {k}', 'dir'))
        if p[0] == 'lin': flat += p[1]
        else:
            for t, s in enumerate(p[1]):
                flat.append(I(f'; step {t}', 'dir')); flat += s
    check_m0(flat)
    flat = resolve_waits(flat)
    out = []; cur = None; k = -1
    groups = []
    for i in flat:
        if i.kind == 'dir' and i.t.startswith('; part'):
            k += 1; groups.append([] if parts[k][0] == 'steps' else [[]]); continue
        if i.kind == 'dir' and i.t.startswith('; step'):
            groups[-1].append([]); continue
        groups[-1][-1].append(i)
    for k, p in enumerate(parts):
        if p[0] == 'lin': out += groups[k][0]
        else: out += roll(groups[k], p[2], p[3], p[4])
    return out

def finish(pro, steps, post, U, label, cnt, vm_out=None):
    flat = list(pro)
    for t, s in enumerate(steps):
        flat.append(I(f'; step {t}', 'dir')); flat += s
    flat.append(I('; endsteps', 'dir'))
    flat += post
    flat = resolve_waits(flat, vm_out)
    p2 = []; st = []; po = []; cur = p2
    for i in flat:
        if i.kind == 'dir' and i.t.startswith('; step'):
            st.append([]); cur = st[-1]; continue
        if i.kind == 'dir' and i.t == '; endsteps':
            cur = po; continue
        cur.append(i)
    return p2 + roll(st, U, label, cnt) + po
```

```python
from common import *
import math, struct

def f2h(x): return '0x%08x' % struct.unpack('<I', struct.pack('<f', x))[0]
LOG2E = 1.4426950408889634
QSCALE = LOG2E / 16.0
K = 1024

class Cfg:
    stf = ''
    weave_z = True
    weave_kv = True
    diag = False
    only = None

SRD_XX, SRD_WIN, SRD_CKV, SRD_WKV, SRD_WQ, SRD_DBG = 4, 8, 16, 52, 56, 60
S_XCD, S_C, S_MT, S_HEAD, S_SEL, S_TB = 64, 65, 66, 67, 68, 69
OOB = 0x80000000

def dpp_add(d, s, ctrl): return I(f'v_add_f32_dpp v{d}, v{s}, v{s} {ctrl} row_mask:0xf bank_mask:0xf')

def gelu_stream(regs_, tmps, vc1):
    c0 = -2.0 * LOG2E * math.sqrt(2.0 / math.pi)
    o = []
    G = len(tmps)
    for a in range(0, len(regs_), G):
        grp = list(zip(regs_[a:a + G], tmps))
        o += [I(f'v_mul_f32 v{t}, v{x}, v{x}') for x, t in grp]
        o += [I(f'v_fmaak_f32 v{t}, v{vc1}, v{t}, {f2h(c0)}') for x, t in grp]
        o += [I(f'v_mul_f32 v{t}, v{x}, v{t}') for x, t in grp]
        o += [I(f'v_exp_f32 v{t}, v{t}') for x, t in grp]
        o += [I(f'v_add_f32 v{t}, 1.0, v{t}') for x, t in grp]
        o += [I(f'v_rcp_f32 v{t}, v{t}') for x, t in grp]
        o += [I(f'v_mul_f32 v{x}, v{x}, v{t}') for x, t in grp]
    return o

def gate_code(tmp):
    x0, x1, gw, a0, a1, t0, t1, vo = tmp, tmp + 4, tmp + 8, tmp + 12, tmp + 13, tmp + 14, tmp + 15, tmp + 12
    iss = [I(f's_lshl_b32 s{S_GATE}, s2, 3'), I(f's_lshl_b32 s101, s{S_WAVE}, 1'), I(f's_add_u32 s{S_GATE}, s{S_GATE}, s101'),
            I(f's_mul_i32 s101, s{S_GATE}, 896'),
            I(f'v_lshlrev_b32 v{vo}, 4, v{V_LANE}'),
            I(f'v_mov_b32 v{t0}, {OOB}'), I(f'v_cmp_gt_u32 vcc, 56, v{V_LANE}'), I(f'v_cndmask_b32 v{vo}, v{t0}, v{vo}, vcc'),
            I(f'buffer_load_dwordx4 {vr(gw,4)}, v{vo}, {sr(SRD_GW,4)}, 0 offen', tag='gate'),
            I(f'buffer_load_dwordx4 {vr(x0,4)}, v{vo}, {sr(SRD_XX,4)}, s101 offen', tag='gate'),
            I(f'buffer_load_dwordx4 {vr(x1,4)}, v{vo}, {sr(SRD_XX,4)}, s101 offen offset:896', tag='gate'),
            I(f's_lshl_b32 s{S_GATE}, s{S_GATE}, 2'), I(f's_add_u32 s{S_GATE}, s{S_GATE}, {GATE}')]
    fin = [W_vm('gate'), I(f'v_mov_b32 v{a0}, 0'), I(f'v_mov_b32 v{a1}, 0')]
    for k in range(4):
        for (hi, op) in ((0, 'v_lshlrev_b32 v{d}, 16, v{s}'), (1, 'v_and_b32 v{d}, 0xffff0000, v{s}')):
            fin += [I(op.format(d=t0, s=gw + k)), I(op.format(d=t1, s=x0 + k)), I(f'v_fmac_f32 v{a0}, v{t0}, v{t1}'),
                    I(op.format(d=t1, s=x1 + k)), I(f'v_fmac_f32 v{a1}, v{t0}, v{t1}')]
    for c in ('row_ror:8', 'row_ror:4', 'row_ror:2', 'row_ror:1'):
        fin += [dpp_add(a0, a0, c), dpp_add(a1, a1, c)]
    for sw in ('v_permlane16_swap_b32', 'v_permlane32_swap_b32'):
        fin += [I(f'v_mov_b32 v{t0}, v{a0}'), I(f'v_mov_b32 v{t1}, v{a1}'),
                I(f'{sw} v{a0}, v{t0}'), I(f'{sw} v{a1}, v{t1}'),
                I(f'v_add_f32 v{a0}, v{a0}, v{t0}'), I(f'v_add_f32 v{a1}, v{a1}, v{t1}')]
    for a in (a0, a1):
        fin += [I(f'v_mul_f32 v{a}, {f2h(-LOG2E)}, v{a}'), I(f'v_exp_f32 v{a}, v{a}'), I(f'v_add_f32 v{a}, 1.0, v{a}'), I(f'v_rcp_f32 v{a}, v{a}')]
    fin += [I(f'v_mov_b32 v{t0}, {OOB}'), I(f'v_cmp_eq_u32 vcc, 0, v{V_LANE}'), I(f'v_cndmask_b32 v{t0}, v{t0}, 0, vcc'),
            I(f'buffer_store_dwordx2 {vr(a0,2)}, v{t0}, {sr(SRD_WS,4)}, s{S_GATE} offen', tag='gst')]
    return iss, fin
SRD_GW = 40
S_GATE = 70

def variant(isV, cfg, ST):
    nm = 'V' if isV else 'K'
    sa = Alloc(71, 74)
    s_wm, s_wn, s_t = sa.get(), sa.get(), sa.get()
    sa2 = Alloc(20, 40)
    vq = Alloc(2, 20); vkv = Alloc(20, 43); vz = Alloc(43, 63)
    V_L16 = 0
    ZX = OpR('zx', SRD_XX, 896, 128, 2, [96 * K + 16 * K * i for i in range(4)], vz, sa2, perm=isV)
    ZW = OpT('zw', SRD_WIN, 3584, 256, 7, [32 * K + 8 * K * i for i in range(8)], vz, sa2)
    A = OpR('A', SRD_CKV, 2048, 256, 8, [0, 32 * K, 64 * K], vkv, sa2, dyn=True)
    B = OpT('B', SRD_WKV, 8192, 512, 8, [96 * K + 16 * K * i for i in range(4)], vkv, sa2, slot0=3)
    QX = OpR('qx', SRD_XX, 896, 256, 8, [32 * K, 64 * K, 0], vq, sa2)
    QW = OpT('qw', SRD_WQ, 8192, 256, 4, [96 * K + 8 * K * i for i in range(8)], vq, sa2, slot0=6)
    s_cnt, s_st, s_st2, s_zst, s_sst, s_poll = [sa2.get() for _ in range(6)]
    TMP = 248
    o = []
    o += srd(SRD_WKV, P_WUV if isV else P_WUK, 1024 * 8192) + srd(SRD_WQ, P_WQ, 448 * 8192) + srd(SRD_GW, P_GW, 896)
    giss, gfin = gate_code(224)
    o += [I(f's_mul_i32 s{ZX.s_off}, s{S_TB}, {128 * 896}'),
          I(f's_mul_i32 s{ZW.s_off}, s{S_XCD}, 224')]
    if isV: o += [I(f's_add_u32 s{ZW.s_off}, s{ZW.s_off}, 1792')]
    zx_s = ZX.setup(TMP, s_t); o += zx_s[:ZX._ndma]
    zw_s = ZW.setup(TMP, s_cnt); o += zw_s[:ZW._ndma]
    o += initial_dmas((ZX, ZW), 14)
    o += ST.mark('dma0')
    o += [I(f's_lshl_b32 s{s_t}, s{S_WAVE}, 5')]
    o += zx_s[ZX._ndma:] + [I(f's_mov_b32 s{s_cnt}, 0')] + zw_s[ZW._ndma:]
    o += [I(f's_lshr_b32 s{s_wm}, s{S_WAVE}, 1'), I(f's_and_b32 s{s_wn}, s{S_WAVE}, 1')]
    o += [I(f's_lshl_b32 s{A.s_off}, s{S_MT}, 19'), I(f's_lshl_b32 s{B.s_off}, s{S_HEAD}, 9'), I(f'v_lshlrev_b32 v{V_L16}, 4, v{V_LANE}')]
    s_tok, s_w = (s_wm, s_wn) if isV else (s_wn, s_wm)
    o += [I(f's_lshl_b32 s{s_t}, s{s_tok}, 7')] + A.setup(TMP, s_t)
    o += [I(f's_lshl_b32 s{s_t}, s{s_w}, 3')] + B.setup(TMP, s_t)
    o = expand(o)
    qs = [I(f's_mul_i32 s{QX.s_off}, s{S_MT}, {256 * 896}'), I(f's_lshl_b32 s{QW.s_off}, s{S_HEAD}, 9')]
    if isV: qs += [I(f's_add_u32 s{QW.s_off}, s{QW.s_off}, 256')]
    qs += [I(f's_lshl_b32 s{s_t}, s{s_wn}, 7')] + QX.setup(TMP, s_t)
    qs += [I(f's_lshl_b32 s{s_t}, s{s_wm}, 2')] + QW.setup(TMP, s_t)
    qs = [Grp([i, j]) if False else i for i, j in zip(qs, qs)]
    o += ST.mark('setup')
    ZA = 192
    if isV: zacc = lambda i, j: ZA + 4 * (i * 7 + j); zM, zN = ZX, ZW; fM, fN = (64, 100), (72, 108)
    else:   zacc = lambda i, j: ZA + 4 * (i * 2 + j); zM, zN = ZW, ZX; fM, fN = (72, 108), (64, 100)
    bgz = BG()
    a0 = A.dma_all(0)
    bgz.at(6, a0[:5], 0, 10); bgz.at(7, a0[5:], 0, 10)
    bgz.at(8, B.dma_all(0), 0, 10); bgz.at(10, B.dma_all(1), 0, 10)
    a1 = A.dma_all(1)
    bgz.at(12, a1[:5] + [], 0, 10); bgz.at(13, a1[5:] + B.dma_all(2), 0, 13)
    zall = {(ZX.name, g) for g in range(4)} | {(ZW.name, g) for g in range(8)}
    zpro, zsteps = gemm_steps(zM, zN, 14, fM, fN, zacc, accp='v', bg=bgz, issued=zall, tail_bar=True, sync_pos=0.85, rd_end=9)
    VC1 = 63
    zregs = [ZA + r for r in range(56)]
    ze = [I(f'v_mov_b32 v{VC1}, {f2h(-2.0 * LOG2E * math.sqrt(2.0 / math.pi) * 0.044715)}')]
    ze += gelu_stream(zregs, [TMP + i for i in range(4)], VC1)
    ln = []
    spin = []
    if not isV:
        ze += [I(f's_lshl_b32 s{s_zst}, s{S_TB}, 3'), I(f's_lshl_b32 s{s_t}, s{S_WAVE}, 1'), I(f's_add_u32 s{s_zst}, s{s_zst}, s{s_t}'),
               I(f's_mul_i32 s{s_zst}, s{s_zst}, 56'), I(f's_mul_i32 s{s_t}, s{S_XCD}, 7'), I(f's_add_u32 s{s_zst}, s{s_zst}, s{s_t}'),
               I(f's_lshl_b32 s{s_zst}, s{s_zst}, 9'), I(f's_add_u32 s{s_zst}, s{s_zst}, {Z1F}'),
               I(f'v_lshlrev_b32 v{TMP+4}, 3, v{V_LANE}')]
        for j in range(2):
            for i in range(7):
                r = zacc(i, j)
                ze += [I(f'v_cvt_pk_bf16_f32 v{r}, v{r}, v{r+1}'), I(f'v_cvt_pk_bf16_f32 v{r+1}, v{r+2}, v{r+3}'),
                       I(f'buffer_store_dwordx2 {vr(r,2)}, v{TMP+4}, {sr(SRD_WS,4)}, s{s_zst} offen offset:{i*512} {cfg.stf}'.rstrip(), tag='z1')]
            if j == 0: ze += [I(f's_add_u32 s{s_zst}, s{s_zst}, {56*512}')]
    else:
        M = 44
        tok = [(i, r) for i in range(2) for r in range(4)]
        for j in range(1, 7):
            for k, (i, r) in enumerate(tok):
                src = zacc(i, 0) + r if j == 1 else M + 2 * k
                ze += [I(f'v_add_f32 v{M+2*k}, v{src}, v{zacc(i,j)+r}')]
        for c in ('row_ror:8', 'row_ror:4', 'row_ror:2', 'row_ror:1'):
            ze += [dpp_add(M + 2 * k, M + 2 * k, c) for k in range(8)]
        ze += [I(f'v_mul_f32 v{M+2*k}, {f2h(1.0/112)}, v{M+2*k}') for k in range(8)]
        for j in range(7):
            for h in range(2):
                ks = list(range(4 * h, 4 * h + 4))
                ze += [I(f'v_sub_f32 v{TMP+(k&3)}, v{zacc(tok[k][0],j)+tok[k][1]}, v{M+2*k}') for k in ks]
                if j == 0: ze += [I(f'v_mul_f32 v{M+2*k+1}, v{TMP+(k&3)}, v{TMP+(k&3)}') for k in ks]
                else: ze += [I(f'v_fmac_f32 v{M+2*k+1}, v{TMP+(k&3)}, v{TMP+(k&3)}') for k in ks]
        for c in ('row_ror:8', 'row_ror:4', 'row_ror:2', 'row_ror:1'):
            ze += [dpp_add(M + 2 * k + 1, M + 2 * k + 1, c) for k in range(8)]
        VS = TMP + 4
        ze += [I(f's_lshl_b32 s{s_sst}, s{S_TB}, 7'), I(f's_lshl_b32 s{s_t}, s{S_WAVE}, 5'), I(f's_add_u32 s{s_sst}, s{s_sst}, s{s_t}'),
               I(f's_lshl_b32 s{s_sst}, s{s_sst}, 3'), I(f's_add_u32 s{s_sst}, s{s_sst}, {STATS}'),
               I(f's_lshl_b32 s{s_t}, s{S_XCD}, 14'), I(f's_add_u32 s{s_zst}, s{s_sst}, s{s_t}'),
               I(f'v_lshrrev_b32 v{VS}, 4, v{V_LANE}'), I(f'v_lshlrev_b32 v{VS}, 6, v{VS}'),
               I(f'v_and_b32 v{VS+1}, 15, v{V_LANE}'), I(f'v_cmp_eq_u32 vcc, 0, v{VS+1}'),
               I(f'v_mov_b32 v{VS+1}, {OOB}'), I(f'v_cndmask_b32 v{VS+1}, v{VS+1}, v{VS}, vcc')]
        for q in range(4):
            ze += [I(f'buffer_store_dwordx4 {vr(M+4*q,4)}, v{VS+1}, {sr(SRD_WS,4)}, s{s_zst} offen offset:{16*q} sc1', tag='stat')]
        for j in range(7):
            r0, r1 = zacc(0, j), zacc(1, j)
            ze += [I(f'v_cvt_pk_bf16_f32 v{r0}, v{r0}, v{r0+1}'), I(f'v_cvt_pk_bf16_f32 v{r0+1}, v{r0+2}, v{r0+3}'),
                   I(f'v_cvt_pk_bf16_f32 v{r0+2}, v{r1}, v{r1+1}'), I(f'v_cvt_pk_bf16_f32 v{r0+3}, v{r1+2}, v{r1+3}')]
        sig_pre = [I(f'v_lshl_add_u32 v{VS}, s{S_WAVE}, 6, v{V_LANE}'), I(f'v_cmp_eq_u32 vcc, 0, v{VS}'),
                   I(f's_lshl_b32 s{s_poll}, s{S_TB}, 2'),
                   I(f'v_mov_b32 v{VS}, {OOB}'), I(f'v_cndmask_b32 v{VS}, v{VS}, 0, vcc'), I(f'v_mov_b32 v{VS+1}, 1'), W_vm('stat')]
        sig_post = [I(f'buffer_atomic_add v{VS+1}, v{VS}, {sr(SRD_DBG,4)}, s{s_poll} offen', tag='sig')]
        L = 44
        F = zacc(1, 0)
        ln += [I(f'v_mov_b32 v{VS}, 0'),
               I(f'buffer_load_dword v{VS+1}, v{VS}, {sr(SRD_DBG,4)}, s{s_poll} offen sc1', tag='poll'),
               I(f'v_and_b32 v{VS+2}, 7, v{V_LANE}'), I(f'v_lshlrev_b32 v{VS+2}, 14, v{VS+2}'),
               I(f'v_lshrrev_b32 v{VS+3}, 3, v{V_LANE}'), I(f'v_lshl_add_u32 v{VS+2}, v{VS+3}, 5, v{VS+2}'),
               W_vm('poll'), Grp([I(f'v_readfirstlane_b32 s{s_t}, v{VS+1}'), I(f's_cmp_ge_u32 s{s_t}, 8'), I('s_cbranch_scc0 L1_spin'), I('L1_spin_ret:')])]
        spin = [I('L1_spin:'), I('s_sleep 2'), I(f'buffer_load_dword v{VS+1}, v{VS}, {sr(SRD_DBG,4)}, s{s_poll} offen sc1'), I('s_waitcnt vmcnt(0)'),
                I(f'v_readfirstlane_b32 s{s_t}, v{VS+1}'), I(f's_cmp_ge_u32 s{s_t}, 8'), I('s_cbranch_scc0 L1_spin'), I('s_branch L1_spin_ret')]
        ln += [I(f'buffer_load_dwordx4 {vr(F,4)}, v{VS+2}, {sr(SRD_WS,4)}, s{s_sst} offen sc1', tag='ld_stat'),
               I(f'buffer_load_dwordx4 {vr(F+4,4)}, v{VS+2}, {sr(SRD_WS,4)}, s{s_sst} offen offset:16 sc1', tag='ld_stat'),
               I(f'; gap', 'dir')]
        ln2 = [W_vm('ld_stat')]
        MU = F + 8; Q2 = F + 12
        red = ('quad_perm:[1,0,3,2]', 'quad_perm:[2,3,0,1]', 'row_half_mirror')
        ln2 += [dpp_add(MU + k, F + 2 * k, red[0]) for k in range(4)]
        for c in red[1:]: ln2 += [dpp_add(MU + k, MU + k, c) for k in range(4)]
        ln2 += [I(f'v_mul_f32 v{MU+k}, 0.125, v{MU+k}'.replace('0.125', f2h(0.125))) for k in range(4)]
        ln2 += [I(f'v_sub_f32 v{Q2+k}, v{F+2*k}, v{MU+k}') for k in range(4)]
        ln2 += [I(f'v_mul_f32 v{Q2+k}, v{Q2+k}, v{Q2+k}') for k in range(4)]
        ln2 += [I(f'v_fmamk_f32 v{Q2+k}, v{Q2+k}, {f2h(112.0)}, v{F+2*k+1}') for k in range(4)]
        for c in red: ln2 += [dpp_add(Q2 + k, Q2 + k, c) for k in range(4)]
        ln2 += [I(f'v_mul_f32 v{Q2+k}, {f2h(1.0/896)}, v{Q2+k}') for k in range(4)]
        ln2 += [I(f'v_add_f32 v{Q2+k}, {f2h(1e-5)}, v{Q2+k}') for k in range(4)]
        ln2 += [I(f'v_rsq_f32 v{Q2+k}, v{Q2+k}') for k in range(4)]
        ln2 += [I(f'v_mul_f32 v{MU+k}, v{MU+k}, v{Q2+k}') for k in range(4)]
        for src, hi in ((Q2, L), (MU, L + 4)):
            ln2 += [I(f'v_mov_b32 v{hi+k}, v{src+k}') for k in range(4)]
            ln2 += [I(f'v_mov_b32_dpp v{hi+k}, v{src+k} row_ror:8 row_mask:0xf bank_mask:0x3') for k in range(4)]
            ln2 += [I(f'v_mov_b32_dpp v{src+k}, v{src+k} row_ror:8 row_mask:0xf bank_mask:0xc') for k in range(4)]
        rs = lambda k: Q2 + k if k < 4 else L + k - 4
        mr = lambda k: MU + k if k < 4 else L + 4 + k - 4
        ln2 += [I(f's_lshl_b32 s{s_zst}, s{S_TB}, 2'), I(f's_add_u32 s{s_zst}, s{s_zst}, s{S_WAVE}'), I(f's_mul_i32 s{s_zst}, s{s_zst}, 56'),
                I(f's_mul_i32 s{s_t}, s{S_XCD}, 7'), I(f's_add_u32 s{s_zst}, s{s_zst}, s{s_t}'), I(f's_lshl_b32 s{s_zst}, s{s_zst}, 10'),
                I(f's_add_u32 s{s_zst}, s{s_zst}, {Z2NF}')]
        for j in range(7):
            r0 = zacc(0, j)
            for h in range(2):
                ds_ = (2 * h, 2 * h + 1)
                for d in ds_:
                    ln2 += [I(f'v_lshlrev_b32 v{TMP+2*(d&1)}, 16, v{r0+d}'), I(f'v_and_b32 v{TMP+2*(d&1)+1}, 0xffff0000, v{r0+d}')]
                for d in ds_:
                    ln2 += [I(f'v_fma_f32 v{TMP+2*(d&1)}, v{TMP+2*(d&1)}, v{rs(2*d)}, -v{mr(2*d)}'),
                            I(f'v_fma_f32 v{TMP+2*(d&1)+1}, v{TMP+2*(d&1)+1}, v{rs(2*d+1)}, -v{mr(2*d+1)}')]
                for d in ds_:
                    ln2 += [I(f'v_cvt_pk_bf16_f32 v{r0+d}, v{TMP+2*(d&1)}, v{TMP+2*(d&1)+1}')]
            ln2 += [I(f'buffer_store_dwordx4 {vr(r0,4)}, v{V_L16}, {sr(SRD_WS,4)}, s{s_zst} offen offset:{(j%4)*1024} {cfg.stf}'.rstrip(), tag='z2n')]
            if j == 3: ln2 += [I(f's_add_u32 s{s_zst}, s{s_zst}, 4096')]
    bgkv = BG()
    pre_kv = []
    NH = 8
    if cfg.weave_z: bgkv.add(chop(ze, 0, NH, 64))
    else: pre_kv += [I('s_nop 7')] + ze
    if isV:
        bgkv.at(NH + 1, sig_pre, 32, 50); bgkv.at(NH + 2, sig_post, 1, 2)
        bgkv.at(24, ln, 0, 40)
        bgkv.add(chop(ln2, 25, 29, 64))
    bgkv.at(NH, giss, 0, 30); bgkv.at(NH, qs, 31, 63)
    bgkv.add(chop(gfin, NH + 1, NH + 3, 64, 0.05, 0.45))
    qx0 = QX.dma_all(0)
    bgkv.at(28, qx0 + QW.dma_all(0) + QW.dma_all(1), 0, 45)
    bgkv.at(29, QX.dma_all(1) + QW.dma_all(2) + QW.dma_all(3), 0, 45)
    bgkv.at(30, QW.dma_all(4) + QW.dma_all(5), 0, 30)
    bgkv.at(31, QX.dma_all(2) + QW.dma_all(6) + QW.dma_all(7), 0, 45)
    acc = lambda i, j: 4 * (i * 8 + j)
    opM, opN = (A, B) if isV else (B, A)
    kvissued = {('A', 0), ('A', 1), ('B', 0), ('B', 1), ('B', 2)}
    kpro, ksteps = gemm_steps(opM, opN, 32, (64, 128), (96, 160), acc, bg=bgkv, issued=kvissued, tail_bar=True)
    DT = 20
    dr = []
    if not isV:
        dr += [I(f's_lshl_b32 s{s_st}, s{S_HEAD}, 7'), I(f's_lshl_b32 s{s_t}, s{S_MT}, 4'), I(f's_add_u32 s{s_st}, s{s_st}, s{s_t}'),
               I(f's_lshl_b32 s{s_t}, s{s_wn}, 3'), I(f's_add_u32 s{s_st}, s{s_st}, s{s_t}'), I(f's_lshl_b32 s{s_st}, s{s_st}, 3'),
               I(f's_lshl_b32 s{s_t}, s{s_wm}, 2'), I(f's_add_u32 s{s_st}, s{s_st}, s{s_t}'), I(f's_lshl_b32 s{s_st}, s{s_st}, 10')]
        for j in range(8):
            for p in range(4):
                src = [acc(2 * p, j) + r for r in range(4)] + [acc(2 * p + 1, j) + r for r in range(4)]
                dr += pack_store(src, 'a', DT, V_L16, s_st, p * 1024, flags=cfg.stf)
            dr += [I(f's_add_u32 s{s_st}, s{s_st}, 8192')]
    else:
        dr += [I(f's_lshl_b32 s{s_st}, s{S_HEAD}, 6'), I(f's_lshl_b32 s{s_t}, s{S_MT}, 3'), I(f's_add_u32 s{s_st}, s{s_st}, s{s_t}'),
               I(f's_lshl_b32 s{s_t}, s{s_wm}, 2'), I(f's_add_u32 s{s_st}, s{s_st}, s{s_t}'), I(f's_lshl_b32 s{s_st}, s{s_st}, 4'),
               I(f's_lshl_b32 s{s_t}, s{s_wn}, 3'), I(f's_add_u32 s{s_st}, s{s_st}, s{s_t}'), I(f's_lshl_b32 s{s_st}, s{s_st}, 10'),
               I(f's_add_u32 s{s_st}, s{s_st}, {VF}')]
        for p in range(4):
            for j in range(8):
                src = [acc(2 * p, j) + r for r in range(4)] + [acc(2 * p + 1, j) + r for r in range(4)]
                dr += pack_store(src, 'a', DT, V_L16, s_st, (j % 4) * 1024, flags=cfg.stf)
                if j == 3: dr += [I(f's_add_u32 s{s_st}, s{s_st}, 4096')]
            dr += [I(f's_add_u32 s{s_st}, s{s_st}, {16384 - 4096}')]
    bgq = BG()
    pre_q = []
    if cfg.weave_kv: bgq.add(chop(dr, 0, 14, 32))
    else: pre_q += [I('s_nop 7')] + dr
    qacc = lambda i, j: 128 + 4 * (i * 8 + j)
    qissued = {('qx', g) for g in range(3)} | {('qw', g) for g in range(8)}
    qpro, qsteps = gemm_steps(QW, QX, 14, (32, 80), (48, 96), qacc, accp='v', bg=bgq, issued=qissued)
    post = [I(f's_lshl_b32 s{s_st2}, s{S_HEAD}, 7'), I(f's_lshl_b32 s{s_t}, s{S_MT}, 4'), I(f's_add_u32 s{s_st2}, s{s_st2}, s{s_t}'),
            I(f's_lshl_b32 s{s_t}, s{s_wn}, 3'), I(f's_add_u32 s{s_st2}, s{s_st2}, s{s_t}'), I(f's_lshl_b32 s{s_st2}, s{s_st2}, 3'),
            I(f's_lshl_b32 s{s_t}, s{s_wm}, 1'), I(f's_add_u32 s{s_st2}, s{s_st2}, s{s_t}'), I(f's_lshl_b32 s{s_st2}, s{s_st2}, 10'),
            I(f's_add_u32 s{s_st2}, s{s_st2}, {QF + (4096 if isV else 0)}')]
    k = 0
    for j in range(8):
        for p in range(2):
            src = [qacc(2 * p, j) + r for r in range(4)] + [qacc(2 * p + 1, j) + r for r in range(4)]
            post += pack_store(src, 'v', 32 + 12 * (k % 4), V_L16, s_st2, p * 1024, scale=f2h(QSCALE), flags=cfg.stf); k += 1
        post += [I(f's_add_u32 s{s_st2}, s{s_st2}, 8192')]
    p0 = ('lin', o + zpro + ST.mark('zpro'))
    p2 = ('lin', ST.mark('zend') + pre_kv + kpro + ST.mark('kpro'))
    for t in range(32): ksteps[t] = ST.mark(f'xk{t}') + ksteps[t]
    p4 = ('lin', ST.mark('kend') + pre_q + qpro + ST.mark('qpro'))
    for t in range(14): qsteps[t] = ST.mark(f'xq{t}') + qsteps[t]
    p6 = ('lin', ST.mark('qend') + post + (ST.mark('post') + [I('s_waitcnt vmcnt(0)')] + ST.mark('drain') if cfg.diag else []))
    parts = [p0, ('steps', zsteps, 99, 'x', 0), p2, ('steps', ksteps, 4, f'L1_{nm}_loop', s_cnt), p4, ('steps', qsteps, 99, 'x', 0), p6]
    return finish_multi(parts), spin

def kernel_l1(name='l1_kernel', cfg=Cfg()):
    ST = Stamps(cfg.diag, 74, cfg.only)
    o = kernel_head(name, 256) + ST.rt() + ST.mark('start')
    o += srd(SRD_XX, P_X, 2048 * 896) + srd(SRD_WIN, P_WIN, 448 * 3584) + srd(SRD_CKV, P_CKV, 2048 * 2048) + srd(SRD_DBG, P_DBG, 256)
    o += [I(f's_and_b32 s{S_XCD}, s2, 7'), I(f's_lshr_b32 s{S_C}, s2, 3'),
          I(f's_and_b32 s{S_MT}, s{S_C}, 7'), I(f's_lshr_b32 s{S_SEL}, s{S_C}, 3'),
          I(f's_and_b32 s{S_HEAD}, s{S_SEL}, 1'), I(f's_lshl_b32 s{S_TB}, s{S_MT}, 1'), I(f's_add_u32 s{S_TB}, s{S_TB}, s{S_HEAD}'),
          I(f's_lshl_b32 s100, s{S_XCD}, 1'), I(f's_add_u32 s{S_HEAD}, s{S_HEAD}, s100'),
          I(f's_cmp_ge_u32 s{S_SEL}, 2'), I('s_cbranch_scc1 L1_V')]
    n0 = ST.n
    a, _ = variant(False, cfg, ST)
    ST.n = n0
    b, spin = variant(True, cfg, ST)
    o += a + [I('s_branch L1_done'), I('L1_V:')] + b + [I('L1_done:')] + ST.rt() + ST.dump()
    o += kernel_tail(name) + spin
    return fix_hazards(o)

if __name__ == '__main__':
    import sys
    ks = []
    def mk(name, **kw):
        cfg = Cfg(); cfg.diag = True
        for k, v in kw.items(): setattr(cfg, k, v)
        prog = kernel_l1(name, cfg)
        txt = [I(i.t.replace('L1_', name + '_L1_'), i.kind) for i in prog]
        ks.append((name, txt, 256, 163840, ''))
    mk('a_kernel')
    mk('b_kernel', only=['xk0', 'xk1', 'xk2', 'xk4', 'xk6', 'xk8', 'xk11', 'xk23', 'xk25', 'xk28', 'kend'])
    mk('c_kernel', weave_z=False, weave_kv=False)
    mk('d_kernel', stf='sc1')
    open('t1.s', 'w').write(assemble_file(ks))
```

```python
from common import *
from att import *
from l1 import Cfg
import sp as SPM

MAXJ = 4
S_JT = 76
S_JW = 80

def enc_att(h, qb, c0, n, nu, role, pid): return [1, h | qb << 8 | role << 16, c0 | n << 8 | nu << 16, pid]
def enc_sp(tt, ft): return [2, tt | ft << 8, 0, 0]

def table_v1(with_sp=False):
    jobs = [[] for _ in range(256)]
    for b in range(256):
        x = b & 7; c = b >> 3
        h = 2 * x + (c & 1); k = c >> 1
        i = k & 7
        pid = h * 8 + i
        L = 15 - i; nL = 2 * L + 2
        na = nL - 18
        if k < 8:
            jobs[b].append(enc_att(h, L, na, 18, 16, 2 if na > 0 else 0, pid))
        else:
            if na > 0: jobs[b].append(enc_att(h, L, 0, na, na, 1, pid))
            jobs[b].append(enc_att(h, i, 0, 2 * i + 2, 2 * i, 0, 0))
    return jobs

def table_text(jobs, label):
    o = ['.p2align 6', f'{label}:']
    for j in jobs:
        assert len(j) < MAXJ
        w = []
        for e in j: w += e
        w += [0] * (4 * MAXJ - len(w))
        o.append('.long ' + ', '.join(str(x) for x in w))
    return '\n'.join(o)

def kernel_l2(name, jobs, cfg, nwg=256):
    ST = Stamps(cfg.diag, 84, cfg.only)
    o = kernel_head(name, nwg) + ST.rt() + ST.mark('start')
    o += srd(AS.DBG, P_DBG, 256)
    o += [I(f's_getpc_b64 s[{S_JT}:{S_JT+1}]'), I(f'{name}_pc:'),
          I(f's_lshl_b32 s100, s2, 6'), I(f's_add_u32 s100, s100, {name}_jt-{name}_pc'),
          I(f's_add_u32 s{S_JT}, s{S_JT}, s100'), I(f's_addc_u32 s{S_JT+1}, s{S_JT+1}, 0'),
          I(f'{name}_next:'), I(f's_load_dwordx4 s[{S_JW}:{S_JW+3}], s[{S_JT}:{S_JT+1}], 0'),
          I(f's_add_u32 s{S_JT}, s{S_JT}, 16'), I(f's_addc_u32 s{S_JT+1}, s{S_JT+1}, 0'), I('s_waitcnt lgkmcnt(0)'),
          I(f's_cmp_eq_u32 s{S_JW}, 0'), I(f's_cbranch_scc1 {name}_fin'),
          I(f's_cmp_eq_u32 s{S_JW}, 2'), I(f's_cbranch_scc1 {name}_sp'),
          I(f's_and_b32 s{AS.H}, s{S_JW+1}, 255'), I(f's_bfe_u32 s{AS.QB}, s{S_JW+1}, 0x80008'), I(f's_lshr_b32 s{AS.ROLE}, s{S_JW+1}, 16'),
          I(f's_and_b32 s{AS.C0}, s{S_JW+2}, 255'), I(f's_bfe_u32 s{AS.N}, s{S_JW+2}, 0x80008'), I(f's_lshr_b32 s{AS.NU}, s{S_JW+2}, 16'),
          I(f's_mov_b32 s{AS.PID}, s{S_JW+3}')]
    o += att_job()
    o += [I('s_waitcnt lgkmcnt(0)'), I('s_barrier'), I(f's_branch {name}_next')]
    o += [I(f'{name}_sp:')] + SPM.sp_job(S_JW + 1) + [I('s_barrier'), I(f's_branch {name}_next')]
    o += [I(f'{name}_fin:')] + ST.rt() + ST.dump(1)
    o += kernel_tail(name)
    return fix_hazards(o), table_text(jobs, f'{name}_jt')
```

```python
from common import *
from l1 import f2h, OOB, Cfg
K = 1024

def kernel_out(name, cfg):
    ST = Stamps(cfg.diag, 84, cfg.only)
    SRD_W, SRD_O, SRD_D = 4, 8, 16
    va = Alloc(2, 32); sa = Alloc(50, 84)
    A = OpF('a', SRD_WS, 8, 2, [8 * K * i for i in range(8)], va, sa)
    W = OpT('w', SRD_W, 896, 256, 7, [64 * K + 8 * K * i for i in range(8)], va, sa, cnat=True)
    s_x, s_c, s_part, s_tb, s_jt, s_t, s_cnt, s_st, s_g, s_u, s_i, s_j = [sa.get() for _ in range(12)]
    TMP = va.get(4)
    o = kernel_head(name, 256) + ST.rt() + ST.mark('start')
    o += srd(SRD_W, P_WO, 4096 * 896) + srd(SRD_O, P_OUT, 2048 * 896) + srd(SRD_D, P_DBG, 256)
    o += [I(f's_and_b32 s{s_x}, s2, 7'), I(f's_lshr_b32 s{s_c}, s2, 3'), I(f's_lshr_b32 s{s_part}, s{s_x}, 1'),
          I(f's_and_b32 s{s_jt}, s{s_c}, 3'), I(f's_and_b32 s{s_tb}, s{s_x}, 1'), I(f's_lshl_b32 s{s_tb}, s{s_tb}, 3'),
          I(f's_lshr_b32 s{s_t}, s{s_c}, 2'), I(f's_add_u32 s{s_tb}, s{s_tb}, s{s_t}'),
          I(f's_mul_i32 s{A.s_off}, s{s_tb}, 156'), I(f's_mul_i32 s{s_t}, s{s_part}, 39'), I(f's_add_u32 s{A.s_off}, s{A.s_off}, s{s_t}'),
          I(f's_lshl_b32 s{A.s_off}, s{A.s_off}, 13'), I(f's_add_u32 s{A.s_off}, s{A.s_off}, {AF}'),
          I(f's_mul_i32 s{W.s_off}, s{s_part}, {39 * 32 * 896}'), I(f's_mul_i32 s{s_j}, s{s_jt}, 224'), I(f's_add_u32 s{W.s_off}, s{W.s_off}, s{s_j}'),
          I(f's_mul_i32 s{s_t}, s{S_WAVE}, {8 * 896}'), I(f's_add_u32 s{s_j}, s{s_j}, s{s_t}'),
          I(f's_lshl_b32 s{s_t}, s{S_WAVE}, 1')]
    o += A.setup(TMP, s_t) + [I(f's_mov_b32 s{s_t}, 0')] + W.setup(TMP, s_t)
    base_dma = W.dma_all
    def dma_sw(gi):
        d = base_dma(gi)
        if gi == 11:
            d = [Grp([I(f's_cmp_eq_u32 s{s_part}, 3'), I(f's_cselect_b32 s{SRD_W}, s{P_WOUT}, s{SRD_W}'), I(f's_cselect_b32 s{SRD_W+1}, s{P_WOUT+1}, s{SRD_W+1}'),
                      I(f's_cselect_b32 s{SRD_W+2}, {896 * 896}, s{SRD_W+2}'), I(f's_cselect_b32 s{W.s_off}, s{s_j}, s{W.s_off}')])] + d
        return d
    W.dma_all = dma_sw
    acc = lambda i, j: 128 + 4 * (j * 7 + i)
    pro, steps = gemm_steps(W, A, 39, (32, 68), (60, 96), acc, accp='v', sync_pos=0.85, rd_end=10)
    post = [I(f's_lshl_b32 s{s_g}, s{s_tb}, 2'), I(f's_add_u32 s{s_g}, s{s_g}, s{s_jt}'),
            I(f's_lshl_b32 s{s_u}, s{s_g}, 4'), I(f's_add_u32 s{s_u}, s{s_u}, s{S_WAVE}'), I(f's_lshl_b32 s{s_u}, s{s_u}, 14'),
            I(f's_add_u32 s{s_u}, s{s_u}, {OUTP}'),
            I(f's_lshl_b32 s{s_t}, s{s_part}, 16'), I(f's_add_u32 s{s_st}, s{s_u}, s{s_t}'), I('s_nop 4')]
    for u in range(14):
        post += [I(f'buffer_store_dwordx4 {vr(128 + 4 * u, 4)}, v{A.v_off}, {sr(SRD_WS,4)}, s{s_st} offen offset:{(u % 4) * 1024} sc1')]
        if u % 4 == 3: post += [I(f's_add_u32 s{s_st}, s{s_st}, 4096')]
    T = 32
    post += [I(f'v_lshl_add_u32 v{T}, s{S_WAVE}, 6, v{V_LANE}'), I(f'v_cmp_eq_u32 vcc, 0, v{T}'), I(f's_lshl_b32 s{s_g}, s{s_g}, 2'),
             I(f'v_mov_b32 v{T}, {OOB}'), I(f'v_cndmask_b32 v{T}, v{T}, 0, vcc'), I(f'v_mov_b32 v{T + 1}, 1'),
             I(f'v_and_b32 v{T + 2}, 15, v{V_LANE}'), I(f'v_mul_u32_u24 v{T + 2}, 896, v{T + 2}'), I(f'v_lshrrev_b32 v{T + 3}, 4, v{V_LANE}'),
             I(f'v_lshl_add_u32 v{T + 2}, v{T + 3}, 3, v{T + 2}'), I(f'v_mov_b32 v{T + 3}, 0'),
             I('s_waitcnt vmcnt(0)'), I('s_barrier'),
             I(f'buffer_atomic_add v{T + 1}, v{T}, {sr(SRD_D,4)}, s{s_g} offen'),
             I('OUT_poll:'), I(f'buffer_load_dword v{T + 4}, v{T + 3}, {sr(SRD_D,4)}, s{s_g} offen sc1'), I('s_waitcnt vmcnt(0)'),
             I(f'v_readfirstlane_b32 s{s_t}, v{T + 4}'), I(f's_cmp_ge_u32 s{s_t}, 4'), I('s_cbranch_scc0 OUT_poll')] + ST.mark('poll')
    post += [I(f's_lshl_b32 s{s_t}, s{s_part}, 10'), I(f's_add_u32 s{s_u}, s{s_u}, s{s_t}')]
    for p in range(4):
        for k in range(4):
            post += [I(f's_add_u32 s{s_st}, s{s_u}, {p * 65536 + k * 4096}'),
                     I(f'buffer_load_dwordx4 {vr(128 + 16 * k + 4 * p, 4)}, v{A.v_off}, {sr(SRD_WS,4)}, s{s_st} offen sc1', tag=('p', p, k))]
    post += [I(f's_lshl_b32 s{s_st}, s{s_tb}, 7'), I(f's_lshl_b32 s{s_t}, s{S_WAVE}, 5'), I(f's_add_u32 s{s_st}, s{s_st}, s{s_t}'),
             I(f's_mul_i32 s{s_st}, s{s_st}, 896'), I(f's_mul_i32 s{s_t}, s{s_jt}, 224'), I(f's_add_u32 s{s_st}, s{s_st}, s{s_t}'),
             I('s_waitcnt vmcnt(0)')]
    for k in range(4):
        b = 128 + 16 * k
        post += [I(f'v_add_f32 v{b + r}, v{b + r}, v{b + 4 + r}') for r in range(4)]
        post += [I(f'v_add_f32 v{b + 8 + r}, v{b + 8 + r}, v{b + 12 + r}') for r in range(4)]
        post += [I(f'v_add_f32 v{b + r}, v{b + r}, v{b + 8 + r}') for r in range(4)]
        post += [I(f'v_cvt_pk_bf16_f32 v{b}, v{b}, v{b + 1}'), I(f'v_cvt_pk_bf16_f32 v{b + 1}, v{b + 2}, v{b + 3}')]
        post += [I(f's_add_u32 s{s_i}, s{s_part}, {4 * k}'), I(f's_cmp_ge_u32 s{s_i}, 7'), I(f's_cselect_b32 s{s_t}, {16 * 896 - 7 * 32}, 0'),
                 I(f's_lshl_b32 s{s_j}, s{s_i}, 5'), I(f's_add_u32 s{s_t}, s{s_t}, s{s_j}'), I(f's_add_u32 s{s_t}, s{s_t}, s{s_st}'),
                 I(f's_cmp_ge_u32 s{s_i}, 14'), I(f's_cselect_b32 s{s_t}, {OOB}, s{s_t}'),
                 I(f'buffer_store_dwordx2 {vr(b, 2)}, v{T + 2}, {sr(SRD_O,4)}, s{s_t} offen')]
    parts = [('lin', expand(o) + ST.mark('setup') + pro + ST.mark('pro')), ('steps', steps, 8, 'OUT_loop', s_cnt), ('lin', ST.mark('loop') + post)]
    p = finish_multi(parts) + ST.rt() + ST.dump(2) + kernel_tail(name)
    return fix_hazards(p)
```

```python
from common import *
from l1 import f2h
K = 1024
SRD_WSP, SRD_BSP = 4, 8

def sp_job(s_w):
    va = Alloc(2, 32); sa = Alloc(50, 76)
    Zf = OpF('z', SRD_WS, 8, 4, [96 * K + 8 * K * i for i in range(8)], va, sa, gran=1, adv=56 * 1024)
    W = OpR('w', SRD_WSP, 4096, 256, 8, [0, 32 * K, 64 * K], va, sa, dyn=True)
    s_tt, s_ft, s_wm, s_wn, s_t, s_cnt, s_st, s_z = [sa.get() for _ in range(8)]
    TMP = va.get(3); V_L8 = va.get(); VB = va.get()
    o = srd(SRD_WSP, P_WSP, 2048 * 4096) + srd(SRD_BSP, P_BSP, 4096)
    o += [I(f's_and_b32 s{s_tt}, s{s_w}, 255'), I(f's_lshr_b32 s{s_ft}, s{s_w}, 8'),
          I(f's_lshr_b32 s{s_wm}, s{S_WAVE}, 1'), I(f's_and_b32 s{s_wn}, s{S_WAVE}, 1'),
          I(f's_lshl_b32 s{W.s_off}, s{s_tt}, 20'), I(f's_lshl_b32 s{Zf.s_off}, s{s_ft}, 13'), I(f's_add_u32 s{Zf.s_off}, s{Zf.s_off}, {Z2NF}'),
          I(f's_lshl_b32 s{s_t}, s{s_wn}, 7')]
    o += W.setup(TMP, s_t) + [I(f's_lshl_b32 s{s_t}, s{s_wm}, 2')] + Zf.setup(TMP, s_t)
    acc = lambda i, j: 4 * (i * 8 + j)
    pro, steps = gemm_steps(Zf, W, 64, (32, 80), (48, 96), acc)
    Z = 128
    BG_ = 192
    X = 208
    post = []
    post += [I(f's_lshl_b32 s{s_z}, s{s_tt}, 4'), I(f's_lshl_b32 s{s_t}, s{s_wn}, 3'), I(f's_add_u32 s{s_z}, s{s_z}, s{s_t}'),
             I(f's_lshl_b32 s{s_st}, s{s_z}, 5'),
             I(f'v_and_b32 v{VB}, 15, v{V_LANE}'), I(f'v_lshlrev_b32 v{TMP}, 1, v{VB}'), I(f'v_lshlrev_b32 v{VB}, 2, v{VB}'),
             I(f'v_lshlrev_b32 v{V_L8}, 3, v{V_LANE}')]
    post += [I(f'buffer_load_ushort v{BG_ + j}, v{TMP}, {sr(SRD_BSP,4)}, s{s_st} offen offset:{32 * j}', tag='b') for j in range(8)]
    post += [I(f's_lshl_b32 s{s_st}, s{s_st}, 1'), I(f's_add_u32 s{s_st}, s{s_st}, {GATE}')]
    post += [I(f'buffer_load_dword v{BG_ + 8 + j}, v{VB}, {sr(SRD_WS,4)}, s{s_st} offen offset:{64 * j}', tag='b') for j in range(8)]
    post += [I(f's_mul_i32 s{s_st}, s{s_z}, 56'), I(f's_lshl_b32 s{s_t}, s{s_ft}, 3'), I(f's_add_u32 s{s_st}, s{s_st}, s{s_t}'),
             I(f's_lshl_b32 s{s_t}, s{s_wm}, 2'), I(f's_add_u32 s{s_st}, s{s_st}, s{s_t}'), I(f's_lshl_b32 s{s_st}, s{s_st}, 9'),
             I(f's_add_u32 s{s_st}, s{s_st}, {Z1F}')]
    for j in range(8):
        post += [I(f'buffer_load_dwordx2 {vr(Z + 2 * (j * 4 + i), 2)}, v{V_L8}, {sr(SRD_WS,4)}, s{s_st} offen offset:{512 * i}', tag=('z', j)) for i in range(4)]
        post += [I(f's_add_u32 s{s_st}, s{s_st}, {56 * 512}')]
    pre = post; post = []
    post += [I(f's_lshl_b32 s{s_st}, s{s_tt}, 1'), I(f's_add_u32 s{s_st}, s{s_st}, s{s_wn}'), I(f's_mul_i32 s{s_st}, s{s_st}, 156'),
             I(f's_lshl_b32 s{s_t}, s{s_ft}, 2'), I(f's_add_u32 s{s_st}, s{s_st}, s{s_t}'), I(f's_lshl_b32 s{s_t}, s{s_wm}, 1'),
             I(f's_add_u32 s{s_st}, s{s_st}, s{s_t}'), I(f's_lshl_b32 s{s_st}, s{s_st}, 13'), I(f's_add_u32 s{s_st}, s{s_st}, {AF + 128 * 8192}'),
             I(f's_add_u32 s{s_z}, s{s_st}, 8192'), I(f'v_lshlrev_b32 v{TMP}, 4, v{V_LANE}'), W_vm('b')]
    post += [I(f'v_lshlrev_b32 v{BG_ + j}, 16, v{BG_ + j}') for j in range(8)]
    post += [I(f'v_sub_f32 v{BG_ + 8 + j}, 1.0, v{BG_ + 8 + j}') for j in range(8)]
    k = 0
    for j in range(8):
        post += [W_vm(('z', j))]
        for p in range(2):
            x = X + 20 * (k % 2); k += 1
            accs = [acc(2 * p, j) + r for r in range(4)] + [acc(2 * p + 1, j) + r for r in range(4)]
            post += [I(f'v_accvgpr_read_b32 v{x + 4 + r}, a{accs[r]}') for r in range(8)]
            zz = [Z + 2 * (j * 4 + 2 * p), Z + 2 * (j * 4 + 2 * p) + 1, Z + 2 * (j * 4 + 2 * p + 1), Z + 2 * (j * 4 + 2 * p + 1) + 1]
            for kk in range(4):
                post += [I(f'v_lshlrev_b32 v{x + 12 + 2 * kk}, 16, v{zz[kk]}'), I(f'v_and_b32 v{x + 12 + 2 * kk + 1}, 0xffff0000, v{zz[kk]}')]
            post += [I(f'v_add_f32 v{x + 4 + r}, v{x + 4 + r}, v{BG_ + j}') for r in range(8)]
            post += [I(f'v_mul_f32 v{x + 12 + r}, v{x + 12 + r}, v{BG_ + 8 + j}') for r in range(8)]
            post += [I(f'v_mul_f32 v{x + 4 + r}, v{x + 4 + r}, v{x + 12 + r}') for r in range(8)]
            post += [I(f'v_cvt_pk_bf16_f32 v{x + kk}, v{x + 4 + 2 * kk}, v{x + 4 + 2 * kk + 1}') for kk in range(4)]
            post += [I(f'buffer_store_dwordx4 {vr(x, 4)}, v{TMP}, {sr(SRD_WS,4)}, s{s_z if p else s_st} offen offset:{(j % 4) * 1024}', tag='st')]
        if j == 3: post += [I(f's_add_u32 s{s_st}, s{s_st}, 4096'), I(f's_add_u32 s{s_z}, s{s_z}, 4096')]
    bg = chop(pre, 60, 63, 32)
    for t, l in bg.items():
        steps[t] = steps[t] + l if False else steps[t]
    parts = [('lin', expand(o) + pro), ('steps', steps, 8, 'SP_loop', s_cnt), ('lin', pre + post)]
    return finish_multi(parts)
```

```python
import sys
from common import *
from l1 import kernel_l1, Cfg
from l2 import *
from outk import kernel_out
def build(path, diag=False):
    cfg = Cfg(); cfg.diag = diag
    ks = [('l1_kernel', kernel_l1('l1_kernel', cfg), 256, 163840, '')]
    p, t = kernel_l2('l2_kernel', table_v1(), cfg)
    ks.append(('l2_kernel', p, 256, 163840, t))
    spj = [[enc_sp(b & 7, b >> 3)] for b in range(56)]
    p, t = kernel_l2('sp_kernel', spj, cfg, 56)
    p = [I(i.t.replace('ATT_', 'ATX_').replace('SP_', 'SPX_'), i.kind) for i in p]
    ks.append(('sp_kernel', p, 56, 163840, t))
    ks.append(('out_kernel', kernel_out('out_kernel', cfg), 256, 131072, ''))
    open(path, 'w').write(assemble_file(ks))
    open(path.replace('.s', '.full.txt'), 'w').write(assemble_file(ks, compact=False))
if __name__ == '__main__':
    build('t2.s', diag=True)
    build('gated_mix__compressed_kv_cla__mixer_gmlp__prompt.s', diag=False)
```

```python
from common import *
from l1 import f2h, dpp_add, OOB
K = 1024
THR = 8.0
BIG = 1e30

V_L16 = 0; V_RD0 = 2; V_RD1 = 3
V_L = 4
V_T = 6
V_D = 12
V_NINF = 13
GA = 14
NM = 16
PP = 24
NR = 8
RING = 40
S = lambda b, i, t: 72 + 32 * b + 4 * (i * 2 + t)
Q = lambda t, s: 136 + 4 * (t * 8 + s)
X = 200
O = lambda d, t: 4 * (d * 2 + t)
P = lambda u, t: PP + 4 * (u * 2 + t)
LA = 6

class AS:
    H, QB, C0, N, NU, ROLE, PID = 50, 51, 52, 53, 54, 55, 56
    J = 57; KOFF, VOFF, KEND, VEND = 58, 59, 60, 61
    T0, T1 = 62, 63; WL = 64; TA, TB = 65, 66; REL = 67; ST = 68; T2 = 69
    MK = 70

def dma_sel(off, end, st):
    return [Grp([I(f's_cmp_lt_u32 s{off}, s{end}'), I(f's_cselect_b32 s{st}, s{off}, {OOB}')]), I(f's_add_u32 s{off}, s{off}, 32768')]

def dma_body(slot, st, tag='dma'):
    o = []
    for q in range(8):
        if q % 4 == 0:
            o.append(I(f's_add_u32 m0, s{AS.WL}, {slot * 32768 + q * 1024}')); m0t = o[-1].t
            if q == 4: o.append(I(f's_add_u32 s{st}, s{st}, 4096'))
        i = I(f'buffer_load_dwordx4 v{V_L16}, {sr(SRD_WS,4)}, s{st} offen offset:{(q % 4) * 1024} lds', tag=tag)
        i.m0 = m0t
        o.append(i)
    return o

def dma_elem(slot, off, end, tag='dma'):
    return dma_sel(off, end, AS.T0) + dma_body(slot, AS.T0, tag)

def rd(slot, f, tag):
    base = V_RD0 if slot < 2 else V_RD1
    return I(f'ds_read_b128 {vr(RING + 4 * (f % NR), 4)}, v{base} offset:{(slot % 2) * 32768 + f * 1024}', tag=tag)

def at(items, pos):
    for k, x in enumerate(items): x.pos = pos + 1e-4 * k; x.pin = True
    return items

BARG = 57
NPRE = 6
DMAG = [2, 10, 18, 26, 34, 42, 50, 62]
def place_dma(d, sel):
    o = at([d[0]], 1)
    for q in range(4): o += at([d[1 + q]], DMAG[q])
    o += at([d[5]], 29) + at([d[6]], 30)
    for q in range(4): o += at([d[7 + q]], DMAG[4 + q])
    o += at([sel[0]], 53) + at([sel[1]], 54)
    return o

def frag_side(slot, next_slot, vm):
    side = []
    nxt = NPRE
    for k in range(16):
        for j in range(2):
            if nxt < 32: side += at([rd(slot, nxt, ('f', nxt))], 4 * k + 0.01 * j); nxt += 1
        if 2 * k + 2 < 32 and not (next_slot is not None and 4 * k + 3 >= BARG): side += at([W_lg([('f', 2 * k + 2), ('f', 2 * k + 3)])], 4 * k + 3)
    if next_slot is not None:
        side += at([I('s_waitcnt lgkmcnt(0)'), vm, I('s_barrier')], BARG)
        side += at([rd(next_slot, 0, ('n', 0)), rd(next_slot, 1, ('n', 1))], BARG + 1)
        side += at([rd(next_slot, 2, ('n', 2)), rd(next_slot, 3, ('n', 3))], BARG + 2)
        side += at([rd(next_slot, 4, ('n', 4)), rd(next_slot, 5, ('n', 5))], BARG + 4)
        side += at([W_lg(('n', 1))], 63)
    return side

def free_gaps(side, n=64):
    used = {}
    for x in side:
        if x.pin: used.setdefault(int(x.pos), []).append(x)
    return [g for g in range(n) if sum(y.cost for y in used.get(g, [])) == 0 and sum(len(y.items) if y.kind == 'group' else 1 for y in used.get(g, [])) <= 1]

def qk_mfmas(b, zero=False):
    mf = []
    for f in range(32):
        i, s = f // 8, f % 8
        for t in range(2):
            d = vr(S(b, i, t), 4)
            c = d if s else ('0' if zero else vr(NM + 4 * t, 4))
            mf.append(I(f'v_mfma_f32_16x16x32_bf16 {d}, {vr(RING + 4 * (f % NR), 4)}, {vr(Q(t, s), 4)}, {c}'))
    return mf

def pv_mfmas():
    return [I(f'v_mfma_f32_16x16x32_bf16 {ar(O(f % 16, t), 4)}, {vr(RING + 4 * (f % NR), 4)}, {vr(P(f // 16, t), 4)}, {ar(O(f % 16, t), 4)}')
            for f in range(32) for t in range(2)]

def exp_cvt(b):
    ex = []; cv = []
    for u in range(2):
        for t in range(2):
            regs_ = [S(b, 2 * u, t) + r for r in range(4)] + [S(b, 2 * u + 1, t) + r for r in range(4)]
            ex.append([I(f'v_exp_f32 v{x}, v{x}') for x in regs_])
            cv.append([I(f'v_cvt_pk_bf16_f32 v{P(u, t) + k}, v{regs_[2*k]}, v{regs_[2*k+1]}') for k in range(4)])
    return ex, cv

def lsum(b):
    return [I(f'v_add_f32 v{V_L + t}, v{V_L + t}, v{S(b, i, t) + r}') for i in range(4) for r in range(4) for t in range(2)]

def maxchk(b):
    vals = [S(b, i, t) + r for i in range(4) for t in range(2) for r in range(4)]
    a, c = V_T, V_T + 1
    o = [I(f'v_max3_f32 v{a}, v{vals[0]}, v{vals[1]}, v{vals[2]}'), I(f'v_max3_f32 v{c}, v{vals[3]}, v{vals[4]}, v{vals[5]}')]
    k = 6; w = 0
    while k + 1 < 32:
        d = (a, c)[w % 2]; w += 1
        o.append(I(f'v_max3_f32 v{d}, v{d}, v{vals[k]}, v{vals[k+1]}')); k += 2
    o.append(I(f'v_max_f32 v{a}, v{a}, v{c}'))
    o.append(I(f'v_cmp_lt_f32 vcc, {f2h(THR)}, v{a}'))
    return o

def mask_ops(b):
    o = [I(f'v_subrev_u32 v{V_T + 2}, s{AS.REL}, v{V_D}'), I(f'v_add_u32 v{V_T + 2}, 48, v{V_T + 2}'), I(f's_sub_u32 s{AS.REL}, s{AS.REL}, 64')]
    items = [(i, t, r) for i in range(4) for t in range(2) for r in range(4)]
    for a in range(0, 32, 3):
        grp = items[a:a + 3]
        for k, (i, t, r) in enumerate(grp):
            c = -(16 * (i - t) + r) + 48
            assert -16 <= c <= 64
            o.append(I(f'v_cmp_lt_i32 {sr(AS.MK + 2 * k, 2)}, {c}, v{V_T + 2}'))
        for k, (i, t, r) in enumerate(grp):
            x = S(b, i, t) + r
            o.append(I(f'v_cndmask_b32 v{x}, v{x}, v{V_NINF}, {sr(AS.MK + 2 * k, 2)}'))
    return o

def xlane(op, d, t):
    o = []
    for sw in ('v_permlane16_swap_b32', 'v_permlane32_swap_b32'):
        o += [I(f'v_mov_b32 v{b}, v{a}') for a, b in zip(d, t)]
        o += [I(f'{sw} v{a}, v{b}') for a, b in zip(d, t)]
        o += [I(f'{op} v{a}, v{a}, v{b}') for a, b in zip(d, t)]
    return o

def rowmax_update(b, first):
    D = [X, X + 1]; T = [X + 2, X + 3]
    o = []
    for k in range(8):
        for t in range(2):
            v = [S(b, i, t) + r for i in range(4) for r in range(4)]
            if k == 0: o += [I(f'v_max3_f32 v{D[t]}, v{v[0]}, v{v[1]}, v{v[2]}')]
            elif k < 7: o += [I(f'v_max3_f32 v{D[t]}, v{D[t]}, v{v[2*k+1]}, v{v[2*k+2]}')]
            else: o += [I(f'v_max_f32 v{D[t]}, v{D[t]}, v{v[15]}')]
    o += xlane('v_max_f32', D, T)
    o += [I(f'v_max_f32 v{D[t]}, {f2h(-BIG) if first else 0}, v{D[t]}') for t in range(2)]
    for t in range(2):
        if first: o += [I(f'v_sub_f32 v{NM + 4 * t + r}, 0, v{D[t]}') for r in range(4)]
        else: o += [I(f'v_sub_f32 v{NM + 4 * t + r}, v{NM + 4 * t + r}, v{D[t]}') for r in range(4)]
    sub = [I(f'v_sub_f32 v{S(b, i, t) + r}, v{S(b, i, t) + r}, v{D[t]}') for i in range(4) for t in range(2) for r in range(4)]
    o += sub
    if not first:
        o += [I(f'v_exp_f32 v{T[t]}, -v{D[t]}') for t in range(2)]
        o += [I(f'v_mul_f32 v{V_L + t}, v{V_L + t}, v{T[t]}') for t in range(2)]
        for d in range(16):
            for t in range(2):
                x = X + 4 + 4 * t
                o += [I(f'v_accvgpr_read_b32 v{x + r}, a{O(d, t) + r}') for r in range(4)]
                o += [I(f'v_mul_f32 v{x + r}, v{x + r}, v{T[t]}') for r in range(4)]
                o += [I(f'v_accvgpr_write_b32 a{O(d, t) + r}, v{x + r}') for r in range(4)]
    return o

PRE_LG = [('f', k) for k in range(2, NPRE)]
EXP = set()
def block(mf, side):
    if 'nodma' in EXP: side = [x for x in side if not (x.kind == 'vmem')]
    if 'nobar' in EXP: side = [x for x in side if x.kind != 'bar']
    if 'nods' in EXP: side = [x for x in side if x.kind not in ('ds', 'pwait')]
    if 'novm' in EXP: side = [x for x in side if 'vmcnt' not in x.t]
    w = weave(mf, side)
    check_m0(w)
    return resolve_waits(w, lg_out=PRE_LG)

NEXA = 3
def phaseA(b):
    rs = 1 + 2 * b
    side = frag_side(rs, (rs + 1) % 4, I('s_waitcnt vmcnt(15)'))
    side += place_dma(dma_body((rs + 3) % 4, AS.TA), dma_sel(AS.KOFF, AS.KEND, AS.TB))
    side += at([I(f's_cmp_ge_u32 s{AS.J}, s{AS.NU}')], 60)
    ex, cv = exp_cvt(b)
    fl = []
    for k in range(NEXA): fl += ex[k] + cv[k]
    side += spread(fl, 0, 40)
    return block(qk_mfmas(1 - b), side)

def phaseB(b, masked):
    rs = (2 + 2 * b) % 4
    side = frag_side(rs, (rs + 1) % 4, I('s_waitcnt vmcnt(15)'))
    side += place_dma(dma_body((rs + 3) % 4, AS.TB), dma_sel(AS.VOFF, AS.VEND, AS.TA))
    side += at([I(f's_add_u32 s{AS.J}, s{AS.J}, 1')], 56) + at([I(f's_cmp_ge_u32 s{AS.J}, s{AS.N}')], 60)
    ex, cv = exp_cvt(b)
    fl0 = []
    for k in range(NEXA, 4): fl0 += ex[k] + cv[k]
    ls = lsum(b)
    if masked:
        fl = spread(fl0, 0, 5) + spread(mask_ops(1 - b), 6, 30) + spread(maxchk(1 - b), 31, 45) + spread(ls, 6, 50)
    else:
        fl = spread(fl0, 0, 5) + spread(ls, 6, 50) + spread(maxchk(1 - b), 6.1, 48)
    w = block(pv_mfmas(), side + fl)
    idx = [k for k, i in enumerate(w) if i.kind == 'mfma']
    last_cv = max([k for k, i in enumerate(w) if i.t.startswith('v_cvt')] + [0])
    assert last_cv < idx[31]
    return w

def pk(op, d, a, b, c=None):
    if c is None: return I(f'v_pk_{op}_f32 {vr(d,2)}, {vr(a,2)}, {vr(b,2)} op_sel_hi:[1,0]')
    return I(f'v_pk_{op}_f32 {vr(d,2)}, {vr(a,2)}, {vr(b,2)}, {vr(c,2)} op_sel_hi:[1,0,1]')

PS = X + 12
V_ROW8 = V_D
def preload(L):
    o = [I(f'v_and_b32 v{V_ROW8}, 15, v{V_LANE}'), I(f's_lshl_b32 s{AS.T0}, s{S_WAVE}, 5'), I(f'v_add_u32 v{V_ROW8}, s{AS.T0}, v{V_ROW8}'),
         I(f'v_lshlrev_b32 v{V_T}, 2, v{V_ROW8}'), I(f'v_lshlrev_b32 v{V_ROW8}, 3, v{V_ROW8}'),
         I(f's_lshl_b32 s{AS.T0}, s{AS.QB}, 9'), I(f's_add_u32 s{AS.T0}, s{AS.T0}, {GATE}'),
         I(f's_lshl_b32 s{AS.T1}, s{AS.PID}, 10'), I(f's_add_u32 s{AS.T1}, s{AS.T1}, {PSTAT}')]
    o += [I(f'buffer_load_dword v{GA + t}, v{V_T}, {sr(SRD_WS,4)}, s{AS.T0} offen offset:{64 * t}') for t in range(2)]
    o += [I(f's_lshl_b32 s{AS.T2}, s{AS.PID}, 16'), I(f's_lshl_b32 s{AS.ST}, s{S_WAVE}, 11'), I(f's_add_u32 s{AS.T2}, s{AS.T2}, s{AS.ST}'),
          I(f's_add_u32 s{AS.T2}, s{AS.T2}, {PART}')]
    o += [I(f's_cmp_eq_u32 s{AS.ROLE}, 2'), I(f's_cbranch_scc0 {L}_nomerge'),
          I(f's_lshl_b32 s{AS.ST}, s{AS.PID}, 8'), I(f's_add_u32 s{AS.ST}, s{AS.ST}, {FLG}'), I(f'v_mov_b32 v{PS}, 0'),
          I(f'{L}_poll:'), I(f'buffer_load_dword v{PS + 1}, v{PS}, {sr(SRD_WS,4)}, s{AS.ST} offen sc1'), I('s_waitcnt vmcnt(0)'),
          I(f'v_readfirstlane_b32 s{AS.J}, v{PS + 1}'), I(f's_cmp_eq_u32 s{AS.J}, 0'), I(f's_cbranch_scc1 {L}_poll')]
    o += [I(f'buffer_load_dwordx2 {vr(PS + 2 * t, 2)}, v{V_ROW8}, {sr(SRD_WS,4)}, s{AS.T1} offen offset:{128 * t} sc1') for t in range(2)]
    o += [I(f's_mov_b32 s{AS.ST}, s{AS.T2}')]
    for s_ in range(8):
        o += [I(f'buffer_load_dwordx4 {vr(Q(t, s_), 4)}, v{V_L16}, {sr(SRD_WS,4)}, s{AS.ST} offen offset:{1024 * t} sc1') for t in range(2)]
        o += [I(f's_add_u32 s{AS.ST}, s{AS.ST}, 8192')]
    o += [I(f'{L}_nomerge:'),
          I(f's_mul_i32 s{AS.ST}, s{AS.QB}, 156'), I(f's_lshl_b32 s{AS.T0}, s{AS.H}, 3'), I(f's_add_u32 s{AS.ST}, s{AS.ST}, s{AS.T0}'),
          I(f's_lshl_b32 s{AS.ST}, s{AS.ST}, 13'), I(f's_lshl_b32 s{AS.T0}, s{S_WAVE}, 11'), I(f's_add_u32 s{AS.ST}, s{AS.ST}, s{AS.T0}'),
          I(f's_add_u32 s{AS.ST}, s{AS.ST}, {AF}')]
    return o

def final(b):
    rs = (2 + 2 * b) % 4
    ex, cv = exp_cvt(b)
    o = [I('s_waitcnt vmcnt(0)'), I('s_barrier')] + [rd(rs, f, ('f', f)) for f in range(NPRE)]
    o += ex[0] + ex[1] + cv[0] + cv[1]
    o += preload(f'ATT_f{b}') + [W_lg(('f', 1))]
    side = frag_side(rs, None, None)
    ls = lsum(b) + xlane('v_add_f32', [V_L + t for t in range(2)], [X + t for t in range(2)])
    side += spread(ex[2] + cv[2] + ex[3] + cv[3], 0, 5) + spread(ls, 6, 50)
    w = weave(pv_mfmas(), side)
    idx = [k for k, i in enumerate(w) if i.kind == 'mfma']
    assert max(k for k, i in enumerate(w) if i.t.startswith('v_cvt')) < idx[31]
    return resolve_waits(o + w)


def epilogue(L, ST, pf):
    o = []
    SC = X + 16; WA = X + 20; TT = X + 24; SP_ = X + 28
    sc = lambda t: SC + 2 * t
    wa = lambda t: WA + 2 * t
    o += [I('s_waitcnt vmcnt(0)')] + pf
    o += [I(f'v_mov_b32 v{sc(t)}, 1.0') for t in range(2)]
    o += [I(f's_cmp_eq_u32 s{AS.ROLE}, 2'), I(f's_cbranch_scc0 {L}_nomerge2')]
    for t in range(2): o += [I(f'v_min_f32 v{TT + t}, v{NM + 4 * t}, v{PS + 2 * t}')]
    for t in range(2): o += [I(f'v_sub_f32 v{sc(t)}, v{TT + t}, v{NM + 4 * t}'), I(f'v_sub_f32 v{wa(t)}, v{TT + t}, v{PS + 2 * t}')]
    for t in range(2): o += [I(f'v_exp_f32 v{sc(t)}, v{sc(t)}'), I(f'v_exp_f32 v{wa(t)}, v{wa(t)}')]
    for t in range(2): o += [I(f'v_mul_f32 v{wa(t)}, v{wa(t)}, v{PS + 2 * t + 1}')]
    for t in range(2): o += [I(f'v_fma_f32 v{V_L + t}, v{V_L + t}, v{sc(t)}, v{wa(t)}')]
    o += [I(f'{L}_nomerge2:')]
    for t in range(2): o += [I(f'v_rcp_f32 v{TT + t}, v{V_L + t}')]
    o += [I(f's_cmp_eq_u32 s{AS.ROLE}, 1'), I(f's_cbranch_scc0 {L}_notw')]
    o += [I(f'v_mov_b32 v{GA + t}, 1.0') for t in range(2)]
    for t in range(2): o += [I(f'v_mov_b32 v{SP_ + 2 * t}, v{NM + 4 * t}'), I(f'v_mov_b32 v{SP_ + 2 * t + 1}, v{V_L + t}')]
    o += [I(f'v_mov_b32 v{TT + 2}, {OOB}'), I(f'v_cmp_gt_u32 vcc, 16, v{V_LANE}'), I(f'v_cndmask_b32 v{V_ROW8}, v{TT + 2}, v{V_ROW8}, vcc')]
    o += [I(f'buffer_store_dwordx2 {vr(SP_ + 2 * t, 2)}, v{V_ROW8}, {sr(SRD_WS,4)}, s{AS.T1} offen offset:{128 * t} sc1') for t in range(2)]
    o += [I(f's_mov_b32 s{AS.ST}, s{AS.T2}'), I(f'{L}_notw:')]
    for t in range(2): o += [I(f'v_mul_f32 v{TT + t}, v{TT + t}, v{GA + t}')]
    for t in range(2): o += [I(f'v_mul_f32 v{sc(t)}, v{sc(t)}, v{TT + t}'), I(f'v_mul_f32 v{wa(t)}, v{wa(t)}, v{TT + t}')]
    o += ST.mark('stats')
    o += [I(f's_cmp_eq_u32 s{AS.ROLE}, 1'), I(f's_cbranch_scc1 {L}_recv_w')]
    B0 = 72
    for variant in ('m', 'n', 'w'):
        if variant == 'm': o += [I(f's_cmp_eq_u32 s{AS.ROLE}, 2'), I(f's_cbranch_scc0 {L}_recv_n')]
        else: o += [I(f'{L}_recv_{variant}:')]
        k = 0
        for s_ in range(8):
            for t in range(2):
                x = B0 + 16 * (k % 4); k += 1
                accs = [O(2 * s_, t) + r for r in range(4)] + [O(2 * s_ + 1, t) + r for r in range(4)]
                o += [I(f'v_accvgpr_read_b32 v{x + r}, a{accs[r]}') for r in range(8)]
                if variant == 'm':
                    c = Q(t, s_)
                    for kk in range(4):
                        o += [I(f'v_lshlrev_b32 v{x + 8 + 2 * kk}, 16, v{c + kk}'), I(f'v_and_b32 v{x + 8 + 2 * kk + 1}, 0xffff0000, v{c + kk}')]
                o += [pk('mul', x + 2 * r, x + 2 * r, sc(t)) for r in range(4)]
                if variant == 'm': o += [pk('fma', x + 2 * r, x + 8 + 2 * r, wa(t), x + 2 * r) for r in range(4)]
                o += [I(f'v_cvt_pk_bf16_f32 v{x + kk}, v{x + 2 * kk}, v{x + 2 * kk + 1}') for kk in range(4)]
                o += [I(f'buffer_store_dwordx4 {vr(x, 4)}, v{V_L16}, {sr(SRD_WS,4)}, s{AS.ST} offen offset:{t * 1024}' + (' sc1' if variant == 'w' else ''))]
            o += [I(f's_add_u32 s{AS.ST}, s{AS.ST}, 8192')]
        if variant != 'w': o += [I(f's_branch {L}_done')]
    o += [I('s_waitcnt vmcnt(0)'), I('s_barrier'),
          I(f'v_lshl_add_u32 v{TT}, s{S_WAVE}, 6, v{V_LANE}'), I(f'v_cmp_eq_u32 vcc, 0, v{TT}'),
          I(f's_lshl_b32 s{AS.ST}, s{AS.PID}, 8'), I(f's_add_u32 s{AS.ST}, s{AS.ST}, {FLG}'),
          I(f'v_mov_b32 v{TT}, {OOB}'), I(f'v_cndmask_b32 v{TT}, v{TT}, 0, vcc'), I(f'v_mov_b32 v{TT + 1}, 1'),
          I(f'buffer_store_dword v{TT + 1}, v{TT}, {sr(SRD_WS,4)}, s{AS.ST} offen sc1'),
          I(f'{L}_done:')]
    return o

def att_job(ST=None, pf=()):
    o = [I('ATT_job:')] + ST.mark('job')
    o += [I(f's_lshl_b32 s{AS.WL}, s{S_WAVE}, 13'),
          I(f's_lshl_b32 s{AS.T0}, s{AS.H}, 5'), I(f's_add_u32 s{AS.T0}, s{AS.T0}, s{AS.C0}'), I(f's_lshl_b32 s{AS.T0}, s{AS.T0}, 15'),
          I(f's_add_u32 s{AS.KOFF}, s{AS.T0}, s{AS.WL}'),
          I(f's_lshl_b32 s{AS.T1}, s{AS.N}, 15'), I(f's_add_u32 s{AS.KEND}, s{AS.T0}, s{AS.T1}'),
          I(f's_add_u32 s{AS.VOFF}, s{AS.KOFF}, {VF - KF}'), I(f's_add_u32 s{AS.VEND}, s{AS.KEND}, {VF - KF}'),
          I(f'v_lshlrev_b32 v{V_L16}, 4, v{V_LANE}')]
    assert KF == 0
    dm = dma_elem(0, AS.KOFF, AS.KEND, 'k0')
    dm += [I(f's_lshl_b32 s{AS.T1}, s{AS.H}, 4'), I(f's_add_u32 s{AS.T1}, s{AS.T1}, s{AS.QB}'), I(f's_lshl_b32 s{AS.T1}, s{AS.T1}, 16'),
           I(f's_lshl_b32 s{AS.T2}, s{S_WAVE}, 14'), I(f's_add_u32 s{AS.T1}, s{AS.T1}, s{AS.T2}'), I(f's_add_u32 s{AS.T1}, s{AS.T1}, {QF}'),
           I(f's_add_u32 s{AS.T2}, s{AS.T1}, 8192')]
    for s_ in range(8):
        for t in range(2):
            dm += [I(f'buffer_load_dwordx4 {vr(Q(t, s_), 4)}, v{V_L16}, {sr(SRD_WS,4)}, s{AS.T2 if t else AS.T1} offen offset:{(s_ % 4) * 1024}', tag=('q', s_))]
        if s_ == 3: dm += [I(f's_add_u32 s{AS.T1}, s{AS.T1}, 4096'), I(f's_add_u32 s{AS.T2}, s{AS.T2}, 4096')]
    dm += dma_elem(1, AS.KOFF, AS.KEND, 'k1')
    dm = expand(dm)
    misc = [I(f'v_mov_b32 v{V_RD0}, v{V_L16}'), I(f'v_add_u32 v{V_RD1}, 0x10000, v{V_L16}'),
            I(f'v_mov_b32 v{V_NINF}, 0xff800000'),
            I(f'v_lshrrev_b32 v{V_D}, 4, v{V_LANE}'), I(f'v_lshlrev_b32 v{V_D}, 2, v{V_D}'), I(f'v_and_b32 v{V_T}, 15, v{V_LANE}'),
            I(f'v_sub_u32 v{V_D}, v{V_D}, v{V_T}'),
            I(f's_lshl_b32 s{AS.REL}, s{AS.QB}, 1'), I(f's_sub_u32 s{AS.REL}, s{AS.REL}, s{AS.C0}'),
            I(f's_sub_u32 s{AS.REL}, s{AS.REL}, s{AS.NU}'), I(f's_lshl_b32 s{AS.REL}, s{AS.REL}, 6'), I(f's_lshl_b32 s{AS.ST}, s{S_WAVE}, 5'),
            I(f's_add_u32 s{AS.REL}, s{AS.REL}, s{AS.ST}'), I(f's_mov_b32 s{AS.J}, 1')]
    misc += [I(f'v_mov_b32 v{V_L + t}, 0') for t in range(2)]
    misc += [I(f'v_accvgpr_write_b32 a{r}, 0') for r in range(128)]
    pro = []
    mi = 0
    for i in dm:
        pro.append(i)
        if i.kind == 'vmem':
            pro += misc[mi:mi + 5]; mi += 5
    pro += misc[mi:]
    pro += ST.mark('zero') + [W_vm('k0'), I('s_barrier')] + ST.mark('pro') + ([I('s_waitcnt lgkmcnt(0)')] if ST.en else [])
    pro += [rd(0, f, ('f', f)) for f in range(NPRE)] + [W_vm(('q', 0)), W_lg(('f', 1))]
    side = frag_side(0, 1, W_vm('k1'))
    for s_ in range(1, 8): side += at([W_vm(('q', s_))], 2 * s_ - 1)
    side += spread(dma_elem(2, AS.VOFF, AS.VEND, 'v0') + dma_elem(3, AS.KOFF, AS.KEND, 'k2') + dma_sel(AS.VOFF, AS.VEND, AS.TA), 0, 50)
    w = weave(qk_mfmas(0, zero=True), side)
    check_m0(pro + w)
    o += resolve_waits(pro + w)
    o += [I(f's_cmp_eq_u32 s{AS.NU}, 0'), I('s_cbranch_scc0 ATT_nomask0'), I('s_nop 7')] + mask_ops(0) + [I('ATT_nomask0:')]
    o += rowmax_update(0, True) + ST.mark('qk0') + ([I('s_waitcnt lgkmcnt(0)')] if ST.en else [])
    cmpN = I(f's_cmp_ge_u32 s{AS.J}, s{AS.N}')
    o += [cmpN, I('s_cbranch_scc1 ATT_F0')]
    o += [I('ATT_A0:')] + phaseA(0) + [I('s_cbranch_scc1 ATT_B0m')] + phaseB(0, False) + [I('s_cbranch_vccnz ATT_S1'), I('ATT_D1:'), I('s_cbranch_scc1 ATT_F1')]
    o += phaseA(1) + [I('s_cbranch_scc1 ATT_B1m')] + phaseB(1, False) + [I('s_cbranch_vccnz ATT_S0'), I('ATT_D0:'), I('s_cbranch_scc0 ATT_A0')]
    o += [I('ATT_F0:')] + ST.mark('loop') + final(0) + [I('s_branch ATT_E')]
    o += [I('ATT_B0m:')] + phaseB(0, True) + [I('s_cbranch_vccnz ATT_S1'), I('s_branch ATT_D1')]
    o += [I('ATT_B1m:')] + phaseB(1, True) + [I('s_cbranch_vccnz ATT_S0'), I('s_branch ATT_D0')]
    for b in range(2):
        o += [I(f'ATT_S{b}:'), I('s_nop 7')] + rowmax_update(b, False) + [I('s_nop 1'), I(cmpN.t), I(f's_branch ATT_D{b}')]
    o += [I('ATT_F1:')] + ST.mark('loop') + final(1)
    o += [I('ATT_E:')] + ST.mark('final') + epilogue('ATT_e', ST, list(pf)) + ST.mark('end')
    return o
```

```python
from core import *
from gemm import *

KF    = 0x0000000
VF    = 0x1000000
QF    = 0x2000000
AF    = 0x3000000
Z1F   = 0x4400000
Z2NF  = 0x4800000
STATS = 0x4C00000
GATE  = 0x4C40000
PART  = 0x5000000
PSTAT = 0x4D00000
OUTP  = 0x6000000
FLG   = 0x4C80000
WS_BYTES = 0x10000000

P_X, P_CKV, P_WQ, P_WUK, P_WUV, P_WO, P_BX, P_WIN, P_WSP, P_BSP, P_WOUT, P_GW, P_OUT, P_DBG, P_WS = [20 + 2 * i for i in range(15)]
SRD_A, SRD_B, SRD_WS, SRD_X = 4, 8, 12, 16

def kernel_head(name, nwg):
    return [I(f'{name}:'),
            I(f's_cmp_ge_u32 s2, {nwg}'), I(f's_cbranch_scc1 {name}_end'),
            I('s_load_dwordx16 s[20:35], s[0:1], 0'), I('s_load_dwordx8 s[36:43], s[0:1], 64'),
            I('s_load_dwordx4 s[44:47], s[0:1], 96'), I('s_load_dwordx2 s[48:49], s[0:1], 112'),
            I(f'v_lshrrev_b32 v2, 6, v0'), I(f'v_and_b32 v{V_LANE}, 63, v0'),
            I(f'v_readfirstlane_b32 s{S_WAVE}, v2'),
            I('s_waitcnt lgkmcnt(0)')] + srd(SRD_WS, P_WS, WS_BYTES)

def kernel_tail(name):
    return [I(f'{name}_end:'), I('s_endpgm')]

def kernel_stop(name):
    return [I(f'{name}_stop:'), I('s_endpgm')]

def srd(d, p, nbytes):
    return [I(f's_mov_b32 s{d}, s{p}'), I(f's_mov_b32 s{d+1}, s{p+1}'),
            I(f's_mov_b32 s{d+2}, {nbytes}'), I(f's_mov_b32 s{d+3}, 0x20000')]

def descriptor(name, vgpr=512, accum=256):
    return f'''.p2align 6
.amdhsa_kernel {name}
  .amdhsa_next_free_vgpr {vgpr}
  .amdhsa_next_free_sgpr 102
  .amdhsa_accum_offset {accum}
  .amdhsa_group_segment_fixed_size 0
  .amdhsa_kernarg_size 120
  .amdhsa_user_sgpr_count 2
  .amdhsa_user_sgpr_kernarg_segment_ptr 1
  .amdhsa_system_sgpr_workgroup_id_x 1
.end_amdhsa_kernel'''

def assemble_file(kernels, header='', compact=True):
    o = []
    if header: o.append(header)
    for (name, prog, grid, lds, extra) in kernels:
        o.append(f'; @launch kernel={name} grid=({grid},1,1) block=(256,1,1) lds={lds}')
    o.append('.amdgcn_target "amdgcn-amd-amdhsa--gfx950"')
    if compact: o.append(MACROS)
    o.append('.text')
    for (name, prog, grid, lds, extra) in kernels:
        o.append(f'.globl {name}'); o.append('.p2align 8'); o.append(f'.type {name},@function')
        o.append(text(prog, compact))
    o.append('.section .rodata,"a"')
    for (name, prog, grid, lds, extra) in kernels:
        o.append(descriptor(name))
    for (name, prog, grid, lds, extra) in kernels:
        if extra: o.append(extra)
    return '\n'.join(o) + '\n'

def pack_store(src, srcp, tmp, voff, soff, imm, scale=None, flags='', tag='st'):
    o = []
    s = list(src)
    if srcp == 'a':
        for k in range(8): o.append(I(f'v_accvgpr_read_b32 v{tmp + 4 + k}, a{src[k]}'))
        s = [tmp + 4 + k for k in range(8)]
    if scale is not None:
        for k in range(8):
            o.append(I(f'v_mul_f32 v{tmp + 4 + k}, {scale}, v{s[k]}'))
        s = [tmp + 4 + k for k in range(8)]
    for k in range(4): o.append(I(f'v_cvt_pk_bf16_f32 v{tmp + k}, v{s[2*k]}, v{s[2*k+1]}'))
    o.append(I(f'buffer_store_dwordx4 {vr(tmp, 4)}, v{voff}, {sr(SRD_WS, 4)}, s{soff} offen offset:{imm} {flags}'.rstrip(), tag=tag))
    return o

STAMP = 0x7000000
STAMP_NAMES = {}
class Stamps:
    def __init__(self, enable, base_sgpr=80, only=None):
        self.en = enable; self.n = 0; self.b = base_sgpr; self.only = only; self.k = 0
    def mark(self, name):
        if not self.en: return []
        if self.only is None and name.startswith('x'): return []
        if self.only is not None and name not in self.only: return []
        return [I(f's_memtime @{name}', 'smem')]
    def rt(self):
        if not self.en: return []
        self.k += 1
        return [I(f's_memrealtime @rt{self.k}', 'smem')]
    def dump(self, kidx=0):
        if not self.en: return []
        self.kidx = kidx
        return [I('; DUMP', 'dir')]
    def finalize(self, prog, kname=''):
        if not self.en: return prog
        names = []
        for i in prog:
            if ' @' in i.t:
                nm = i.t.split('@')[1]
                if nm not in names: names.append(nm)
        assert self.b + 2 * len(names) <= 100, 'too many stamps'
        STAMP_NAMES[kname] = (self.kidx, names)
        out = []
        for i in prog:
            if ' @' in i.t:
                op, nm = i.t.split('@'); r = self.b + 2 * names.index(nm)
                out.append(I(f'{op}s[{r}:{r+1}]', 'smem'))
            elif i.t == '; DUMP':
                out += [I('s_waitcnt lgkmcnt(0)'), I(f's_lshl_b32 s100, s2, 2'), I(f's_add_u32 s100, s100, s{S_WAVE}'), I('s_lshl_b32 s100, s100, 6'),
                        I(f's_add_u32 s100, s100, {STAMP + self.kidx * 0x10000}'), I('v_mov_b32 v2, 0')]
                for k in range(len(names)):
                    out += [I(f'v_mov_b32 v3, s{self.b + 2 * k}'), I(f'buffer_store_dword v3, v2, {sr(SRD_WS,4)}, s100 offen offset:{4 * k}'), I('s_nop 1')]
                out += [I('s_waitcnt vmcnt(0)')]
            else: out.append(i)
        return out

def touch_buf(srd_, vt, s_tmp, per_wg_log2, tag='pf', wave_lo=0):
    nw = (1 << per_wg_log2) // 8192
    o = [I(f's_lshl_b32 s{s_tmp}, s2, {per_wg_log2}'), I(f's_sub_u32 s101, s{S_WAVE}, {wave_lo}'), I(f's_lshl_b32 s101, s101, 13'),
         I(f's_add_u32 s{s_tmp}, s{s_tmp}, s101'), I(f's_cmp_lt_u32 s101, {max(nw, 1) * 8192}'), I(f's_cselect_b32 s{s_tmp}, s{s_tmp}, 0x80000000'),
         I(f'v_lshlrev_b32 v{vt}, 7, v{V_LANE}'),
         I(f'buffer_load_dword v{vt}, v{vt}, {sr(srd_,4)}, s{s_tmp} offen', tag=tag)]
    return o

def code_srd(d, lab0, lab1, uniq):
    return [I(f's_getpc_b64 s[{d}:{d+1}]'), I(f's_add_u32 s{d}, s{d}, {lab0}@rel32@lo+4'), I(f's_addc_u32 s{d+1}, s{d+1}, {lab0}@rel32@hi+12'),
            I(f's_mov_b32 s{d+2}, {lab1}-{lab0}'), I(f's_mov_b32 s{d+3}, 0x20000')]

def touch_code(d, lab0, lab1, vt, s_tmp, per_xcd=True):
    o = code_srd(d, lab0, lab1, None)
    o += [I(f's_lshr_b32 s{s_tmp}, s2, 3') if per_xcd else I(f's_mov_b32 s{s_tmp}, s2'),
          I(f's_lshl_b32 s{s_tmp}, s{s_tmp}, 2'), I(f's_add_u32 s{s_tmp}, s{s_tmp}, s{S_WAVE}'), I(f's_lshl_b32 s{s_tmp}, s{s_tmp}, 13'),
          I(f'v_lshlrev_b32 v{vt}, 7, v{V_LANE}'),
          I(f'buffer_load_dword v{vt}, v{vt}, {sr(d,4)}, s{s_tmp} offen', tag='pf')]
    return o
```

```python
import re

class I:
    __slots__ = ('t', 'kind', 'tag', 'wait', 'pos', 'cost', 'm0', 'pin')
    def __init__(self, t, kind=None, tag=None, wait=None, pos=None):
        self.t = t
        self.kind = kind or classify(t)
        self.tag = tag
        self.wait = wait
        self.pos = pos
        self.cost = vcost(self)
        self.m0 = None
        self.pin = False
    def __repr__(self): return self.t

TRANS = ('v_exp_f32', 'v_log_f32', 'v_rcp_f32', 'v_rsq_f32', 'v_sqrt_f32', 'v_sin_f32', 'v_cos_f32')
def classify(t):
    op = t.split()[0]
    if op.endswith(':'): return 'label'
    if op.startswith('v_mfma'): return 'mfma'
    if op.startswith('ds_'): return 'ds'
    if op.startswith('buffer_') or op.startswith('global_'): return 'vmem'
    if op in TRANS: return 'trans'
    if op.startswith('v_'): return 'valu'
    if op == 's_waitcnt': return 'wait'
    if op == 's_barrier': return 'bar'
    if op.startswith('s_cbranch') or op == 's_branch' or op == 's_setpc_b64' or op == 's_endpgm': return 'branch'
    if op.startswith('s_load') or op in ('s_memtime', 's_memrealtime'): return 'smem'
    if op.startswith('s_'): return 'salu'
    if op.startswith('.') or op.startswith(';'): return 'dir'
    if op == 'WAIT': return 'pwait'
    raise ValueError('unknown instr ' + t)
def vcost(i):
    return {'valu': 4, 'trans': 8, 'ds': 4, 'vmem': 8, 'mfma': 8}.get(i.kind, 0)

class Grp(I):
    __slots__ = ('items',)
    def __init__(self, items):
        self.t = '; group'; self.kind = 'group'; self.tag = None; self.wait = None; self.pos = None; self.m0 = None; self.pin = False
        self.items = items; self.cost = sum(i.cost for i in items)

def expand(l):
    o = []
    for i in l:
        if i.kind == 'group': o += i.items
        else: o.append(i)
    return o

def W_vm(tag):
    return I('WAIT vm', 'pwait', wait=('vm', tag))
def W_lg(tag):
    return I('WAIT lgkm', 'pwait', wait=('lgkm', tag))

def vr(a, n=1, p='v'):
    return f'{p}{a}' if n == 1 else f'{p}[{a}:{a+n-1}]'
def ar(a, n=1): return vr(a, n, 'a')
def sr(a, n=1): return vr(a, n, 's')

def _fit(state, x):
    p, vs = state
    bad = False
    for i in (x.items if x.kind == 'group' else [x]):
        if i.kind in ('label', 'dir'): continue
        if i.cost == 0: p += 1
        else:
            if i.kind in ('ds', 'vmem') and vs: bad = True
            p = max(p, 2) + i.cost // 4
            if i.kind in ('valu', 'trans'): vs = True
    return [p, vs], (bad or p > 4)

WEAVE_STATS = []
def weave(mf, side, budget=8, maxn=3):
    rank = lambda x: 0 if x.cost == 0 else (1 if x.kind == 'ds' else 2 if x.kind == 'vmem' else 3)
    pins = sorted([x for x in side if x.pin], key=lambda x: x.pos)
    side = sorted([x for x in side if not x.pin], key=lambda x: x.pos)
    out = []
    k = 0
    while k < len(side) and side[k].pos < 0:
        out.append(side[k]); k += 1
    n = len(mf)
    over = 0
    for g in range(n):
        out.append(mf[g])
        pg = sorted([x for x in pins if int(x.pos) == g], key=rank)
        head = [x for x in pg if rank(x) < 3]; tailp = [x for x in pg if rank(x) == 3]
        st = [1, False]
        for x in head: st, _ = _fit(st, x)
        cur = list(head)
        while k < len(side) and side[k].pos < g + 1:
            st2, bad = _fit(st, side[k])
            chk = st2
            for x in tailp:
                chk, b2 = _fit(chk, x); bad = bad or b2
            if bad and g < n - 1 and (cur or tailp): break
            cur.append(side[k]); st = st2; k += 1
        for x in tailp: st, _ = _fit(st, x)
        over += max(0, st[0] - 4)
        out += cur + tailp
    out += side[k:]
    WEAVE_STATS.append((n, over, len(side) - k))
    assert all(0 <= int(x.pos) < n for x in pins)
    return expand(out)

def spread(items, p0, p1):
    n = len(items)
    for i, it in enumerate(items):
        it.pos = p0 + (p1 - p0) * i / max(n, 1)
    return items

def resolve_waits(prog, vm_out=None, lg_out=None):
    vm = list(vm_out or []); lg = list(lg_out or [])
    out = []
    for ins in prog:
        if ins.kind == 'vmem' and not ins.t.startswith('buffer_inv') and not ins.t.startswith('buffer_wbl2'):
            vm.append(ins.tag)
        elif ins.kind == 'vmem':
            vm.append(ins.tag)
        elif ins.kind == 'ds':
            lg.append(ins.tag)
        elif ins.kind == 'smem':
            lg.append('__smem__')
        elif ins.kind == 'wait':
            m = re.search(r'vmcnt\((\d+)\)', ins.t)
            if m:
                n = int(m.group(1)); vm = vm[len(vm)-n:] if n < len(vm) else vm
                if n == 0: vm = []
            m = re.search(r'lgkmcnt\((\d+)\)', ins.t)
            if m:
                n = int(m.group(1)); lg = lg[len(lg)-n:] if n < len(lg) else lg
                if n == 0: lg = []
        elif ins.kind == 'pwait':
            which, tags = ins.wait
            if not isinstance(tags, (list, set, tuple)) or isinstance(tags, tuple): tags = [tags]
            q = vm if which == 'vm' else lg
            last = -1
            for i, t in enumerate(q):
                if t in tags: last = i
            if last < 0:
                continue
            n = len(q) - 1 - last
            if which == 'lgkm' and '__smem__' in q: n = 0
            lim = 63 if which == 'vm' else 15
            n = min(n, lim)
            name = 'vmcnt' if which == 'vm' else 'lgkmcnt'
            w = I(f's_waitcnt {name}({n})')
            out.append(w)
            if which == 'vm': vm = q[len(q)-n:] if n else []
            else: lg = q[len(q)-n:] if n else []
            continue
        out.append(ins)
    return out

REG = re.compile(r'\b([vas])(\d+)\b|\b([vas])\[(\d+):(\d+)\]')
def regs(tok):
    s = set()
    for m in REG.finditer(tok):
        if m.group(1): s.add((m.group(1), int(m.group(2))))
        else:
            for r in range(int(m.group(4)), int(m.group(5)) + 1): s.add((m.group(3), r))
    for nm in ('vcc', 'exec', 'm0', 'scc'):
        if re.search(r'\b' + nm + r'(_lo|_hi)?\b', tok): s.add((nm, 0))
    return s

def rw(ins):
    t = ins.t.split(';')[0].strip()
    parts = t.split(None, 1)
    op = parts[0]
    ops = [o.strip() for o in parts[1].split(',')] if len(parts) > 1 else []
    k = ins.kind
    if k == 'mfma':
        return regs(ops[0]), regs(ops[1]) | regs(ops[2]) | regs(ops[3]), regs(ops[3])
    if k in ('valu', 'trans'):
        w = regs(ops[0]); r = set()
        for o in ops[1:]: r |= regs(o)
        if op.startswith('v_cmp'):
            pass
        if op.startswith(('v_fmac', 'v_permlane', 'v_dot2c', 'v_writelane')): r |= w
        if op.startswith('v_permlane') and 'swap' in op: w |= regs(ops[1])
        if op.startswith(('v_add_co', 'v_sub_co', 'v_addc_co', 'v_subb_co')): w |= regs(ops[1])
        if 'dpp' in op or 'row_' in t or 'quad_perm' in t: r |= w
        if op.startswith('v_cndmask') and len(ops) == 3: r.add(('vcc', 0))
        return w, r, set()
    if k == 'ds':
        if op.startswith('ds_read') or op.startswith('ds_bpermute') or op.startswith('ds_swizzle') or op.startswith('ds_permute'):
            r = set()
            for o in ops[1:]: r |= regs(o)
            return regs(ops[0]), r, set()
        r = set()
        for o in ops: r |= regs(o)
        return set(), r, set()
    if k == 'vmem':
        if op.startswith('buffer_load') and not re.search(r'\blds\b', t):
            r = set()
            for o in ops[1:]: r |= regs(o)
            return regs(ops[0]), r, set()
        if op.startswith('global_load') and 'lds' not in op:
            r = set()
            for o in ops[1:]: r |= regs(o)
            return regs(ops[0]), r, set()
        r = set()
        for o in ops: r |= regs(o)
        if re.search(r'\blds\b', t) or 'lds' in op: r.add(('m0', 0))
        w = set()
        if 'atomic' in op and 'sc0' in t: w = regs(ops[0])
        return w, r, set()
    if k in ('salu', 'smem'):
        if op.startswith('s_cmp') or op.startswith('s_bitcmp'):
            r = set()
            for o in ops: r |= regs(o)
            return {('scc', 0)}, r, set()
        if op in ('s_nop', 's_setprio', 's_sleep'): return set(), set(), set()
        w = regs(ops[0]) if ops else set(); r = set()
        for o in ops[1:]: r |= regs(o)
        if 'saveexec' in op: w.add(('exec', 0))
        return w, r, set()
    return set(), set(), set()

def states(ins):
    if ins.kind in ('label', 'dir', 'pwait'): return 0
    if ins.t.startswith('s_nop'):
        return int(ins.t.split()[1], 0) + 1
    return 1

def is_wide_store(ins):
    return ins.kind == 'vmem' and re.match(r'(buffer|global)_store_dwordx[34]', ins.t) is not None

def hazard_need(p, c, pw, pr, pc, cw, cr, cc):
    need = 0
    pk, ck = p.kind, c.kind
    pv = pk in ('valu', 'trans'); cv = ck in ('valu', 'trans')
    vg = lambda s: {x for x in s if x[0] in 'va'}
    sg = lambda s: {x for x in s if x[0] in ('s', 'vcc')}
    if pk == 'mfma':
        passes = 8 if '32x32' in p.t else 4
        d = pw
        if ck == 'mfma':
            ab = cr - cc | (regs(c.t.split(',')[1]) | regs(c.t.split(',')[2]))
            if d & (regs(c.t.split(',')[1]) | regs(c.t.split(',')[2])): need = max(need, passes + 4)
            if d & cc and cc != d: need = max(need, passes + 2)
            if d & cw and cc != d and not (d & cc): need = max(need, passes + 2)
        elif cv:
            if d & (cr | cw): need = max(need, passes + 4)
            if pc & cw: need = max(need, passes - 1)
        elif ck in ('ds', 'vmem'):
            if d & (cr | cw): need = max(need, passes + 4)
    if pv:
        if ck == 'mfma' and vg(pw) & cr: need = max(need, 2)
        if pk == 'trans' and ck == 'valu' and pw & cr: need = max(need, 1)
        if pk == 'trans' and ck in ('ds', 'vmem', 'mfma') and pw & cr: need = max(need, 2 if ck == 'mfma' else 1)
        if cv and sg(pw) & cr: need = max(need, 2)
        if ck == 'vmem' and sg(pw) & cr: need = max(need, 5)
        if cv and c.t.startswith(('v_readfirstlane', 'v_readlane')) and vg(pw) & cr: need = max(need, 1)
        if cv and (c.t.startswith('v_permlane') or '_dpp' in c.t or 'row_' in c.t or 'quad_perm' in c.t) and vg(pw) & (cr | cw): need = max(need, 2)
        if ('exec', 0) in pw and (cv or ck == 'mfma'): need = max(need, 5)
        if c.kind == 'salu' and sg(pw) & cr: need = max(need, 1)
    if pk == 'salu':
        if ('m0', 0) in pw and ('m0', 0) in cr and ck in ('vmem', 'ds'): need = max(need, 1)
    if is_wide_store(p):
        data = regs(p.t.split(None, 1)[1].split(',')[0]) if p.t.startswith('buffer') else regs(p.t.split(None, 1)[1].split(',')[1])
        if data & cw: need = max(need, 2)
    if pk == 'ds' and p.t.startswith('ds_write_b128'):
        pass
    return need

def fix_hazards(prog, verbose=False, window=24):
    out = []
    info = []
    nins = 0
    for ins in prog:
        if ins.kind in ('label', 'dir'):
            out.append(ins); info.append(None); continue
        cw, cr, cc = rw(ins)
        need_pad = 0
        dist = 0
        i = len(out) - 1
        while i >= 0 and dist < window:
            p = out[i]
            if info[i] is not None:
                n = hazard_need(p, ins, *info[i], cw, cr, cc)
                if n > dist: need_pad = max(need_pad, n - dist)
                dist += states(p)
            i -= 1
        if need_pad:
            if verbose: print('pad', need_pad, 'before', ins.t)
            nins += 1
            while need_pad > 0:
                k = min(need_pad, 16)
                nop = I(f's_nop {k-1}'); out.append(nop); info.append(({}, {}, {}))
                info[-1] = (set(), set(), set())
                need_pad -= k
        out.append(ins); info.append((cw, cr, cc))
    return out

def check_wrap(body):
    a = fix_hazards(body + body)
    if len(a) != 2 * len(body):
        extra = [x.t for x in a]
        raise AssertionError('loop back-edge hazard needs padding')

MACROS = r"""
.macro mA d,a,b
v_mfma_f32_16x16x32_bf16 a[\d:\d+3], v[\a:\a+3], v[\b:\b+3], a[\d:\d+3]
.endm
.macro mV d,a,b
v_mfma_f32_16x16x32_bf16 v[\d:\d+3], v[\a:\a+3], v[\b:\b+3], v[\d:\d+3]
.endm
.macro mAz d,a,b
v_mfma_f32_16x16x32_bf16 a[\d:\d+3], v[\a:\a+3], v[\b:\b+3], 0
.endm
.macro mVz d,a,b
v_mfma_f32_16x16x32_bf16 v[\d:\d+3], v[\a:\a+3], v[\b:\b+3], 0
.endm
.macro rB d,a,o
ds_read_b128 v[\d:\d+3], v\a offset:\o
.endm
.macro rT d,a,o
ds_read_b64_tr_b16 v[\d:\d+1], v\a offset:\o
.endm
.macro aR d,a
v_accvgpr_read_b32 v\d, a\a
.endm
.macro aW d,a
v_accvgpr_write_b32 a\d, v\a
.endm
.macro cP d,a,b
v_cvt_pk_bf16_f32 v\d, v\a, v\b
.endm
.macro dL v,s,f,o
buffer_load_dwordx4 v\v, s[\s:\s+3], s\f offen offset:\o lds
.endm
"""
_CMP = [
    (re.compile(r'^v_mfma_f32_16x16x32_bf16 ([av])\[(\d+):\d+\], v\[(\d+):\d+\], v\[(\d+):\d+\], ([av])\[(\d+):\d+\]$'),
     lambda m: (f'm{m[1].upper()} {m[2]},{m[3]},{m[4]}' if (m[1] == m[5] and m[2] == m[6]) else None)),
    (re.compile(r'^v_mfma_f32_16x16x32_bf16 ([av])\[(\d+):\d+\], v\[(\d+):\d+\], v\[(\d+):\d+\], 0$'),
     lambda m: f'm{m[1].upper()}z {m[2]},{m[3]},{m[4]}'),
    (re.compile(r'^ds_read_b128 v\[(\d+):\d+\], v(\d+) offset:(\d+)$'), lambda m: f'rB {m[1]},{m[2]},{m[3]}'),
    (re.compile(r'^ds_read_b64_tr_b16 v\[(\d+):\d+\], v(\d+) offset:(\d+)$'), lambda m: f'rT {m[1]},{m[2]},{m[3]}'),
    (re.compile(r'^v_accvgpr_read_b32 v(\d+), a(\d+)$'), lambda m: f'aR {m[1]},{m[2]}'),
    (re.compile(r'^v_accvgpr_write_b32 a(\d+), v(\d+)$'), lambda m: f'aW {m[1]},{m[2]}'),
    (re.compile(r'^v_cvt_pk_bf16_f32 v(\d+), v(\d+), v(\d+)$'), lambda m: f'cP {m[1]},{m[2]},{m[3]}'),
    (re.compile(r'^buffer_load_dwordx4 v(\d+), s\[(\d+):\d+\], s(\d+) offen offset:(\d+) lds$'), lambda m: f'dL {m[1]},{m[2]},{m[3]},{m[4]}'),
]
def text(prog, compact=True):
    o = []
    for i in prog:
        if i.kind == 'pwait': raise ValueError('unresolved wait')
        t = i.t
        if compact:
            if i.kind == 'dir' and t.startswith(';'): continue
            for rx, f in _CMP:
                m = rx.match(t)
                if m:
                    r = f(m)
                    if r: t = r; break
            o.append(t)
        else:
            o.append(t if i.kind in ('label', 'dir') else '  ' + t)
    return '\n'.join(o)

def roll(steps, U, label, cnt_sreg, min_iters=2):
    txt = [tuple(i.t for i in s) for s in steps]
    n = len(steps)
    best = (0, 0)
    for a in range(n):
        k = 1
        while a + (k + 1) * U <= n and txt[a + k * U: a + (k + 1) * U] == txt[a: a + U]: k += 1
        if a + U <= n and k > best[0]: best = (k, a)
    k, a = best
    out = []
    if k < min_iters:
        for s in steps: out += s
        return out
    for s in steps[:a]: out += s
    body = []
    for s in steps[a:a + U]: body += s
    body = fix_hazards(body)
    tail = [I(f's_sub_u32 s{cnt_sreg}, s{cnt_sreg}, 1'), I(f's_cmp_lg_u32 s{cnt_sreg}, 0'), I(f's_cbranch_scc1 {label}')]
    check_wrap(body + tail)
    out.append(I(f's_mov_b32 s{cnt_sreg}, {k}'))
    out.append(I(f'{label}:'))
    out += body + tail
    for s in steps[a + k * U:]: out += s
    return out

def check_m0(prog):
    last = None
    for i in prog:
        if i.kind == 'salu' and re.match(r's_\w+ m0,', i.t): last = i.t
        if i.m0 is not None and i.m0 != last:
            raise AssertionError(f'm0 mismatch at {i.t}: expected {i.m0} have {last}')
```

```python
from core import *

class Alloc:
    def __init__(self, lo, hi): self.p = lo; self.hi = hi
    def get(self, n=1, align=1):
        self.p = (self.p + align - 1) // align * align
        r = self.p; self.p += n
        assert self.p <= self.hi, 'out of regs'
        return r

V_LANE = 1
S_WAVE = 3

class OpBase:
    gran = 1
    def dma_all(self, gi):
        slot = self.slots[(gi + self.slot0) % len(self.slots)]
        dyn = getattr(self, 'dyn', False)
        out = []
        for q in range(self.nq):
            if q % 4 == 0:
                if dyn:
                    out.append(Grp([I(f's_add_u32 s100, s{self.s_wl}, s{self.s_ws}'), I(f's_add_u32 m0, s100, {self.lo + q * 1024}')])); m0t = out[-1].items[1].t
                else:
                    out.append(I(f's_add_u32 m0, s{self.s_wl}, {slot + q * 1024}')); m0t = out[-1].t
            out.append(I(f'buffer_load_dwordx4 v{self.voff(q)}, {sr(self.srd,4)}, s{self.s_off} offen offset:{(q % 4) * 1024} lds',
                         tag=(self.name, gi)))
            out[-1].m0 = m0t
        out.append(I(f's_add_u32 s{self.s_off}, s{self.s_off}, {self.adv}'))
        if dyn:
            span = len(self.slots) * self.gbytes
            out.append(Grp([I(f's_add_u32 s{self.s_ws}, s{self.s_ws}, {self.gbytes}'), I(f's_cmp_lt_u32 s{self.s_ws}, {span}'),
                            I(f's_cselect_b32 s{self.s_ws}, s{self.s_ws}, 0')]))
        return out

class OpR(OpBase):
    gran = 2
    def __init__(self, name, srd, stride, rows_wg, nfr, slots, va, sa, perm=False, slot0=0, dyn=False):
        self.name, self.srd, self.stride, self.rows, self.nfr, self.slots, self.perm = name, srd, stride, rows_wg, nfr, slots, perm
        self.dyn = dyn
        self.slot0 = slot0
        self.nq = rows_wg // 32
        self.lo = min(slots)
        self.nwin = (max(slots) + rows_wg * 128 - 1 - self.lo) // 65536 + 1
        if dyn:
            self.nwin = 1
            self.s_rs = sa.get(); self.s_ws = sa.get()
            self.v_b = va.get(1)
        self.v_off = va.get(self.nq); self.v_rd = va.get(2 * self.nwin)
        self.s_wl = sa.get(); self.s_off = sa.get()
        self.adv = 128
        self.gbytes = rows_wg * 128
    def voff(self, q): return self.v_off + q
    def setup(self, tmp, wave_row0):
        t0, t1, t2 = tmp, tmp + 1, tmp + 2
        o = []
        rpw = self.rows // 4
        o += [I(f's_mul_i32 s{self.s_wl}, s{S_WAVE}, {rpw * self.stride}'),
              I(f's_add_u32 s{self.s_off}, s{self.s_off}, s{self.s_wl}'),
              I(f's_mul_i32 s{self.s_wl}, s{S_WAVE}, {rpw * 128}')]
        o += [I(f'v_lshrrev_b32 v{t0}, 3, v{V_LANE}'),
              I(f'v_mul_u32_u24 v{t0}, {self.stride}, v{t0}'),
              I(f'v_bfe_u32 v{t2}, v{V_LANE}, 4, {1 if self.perm else 2}'),
              I(f'v_and_b32 v{t1}, 7, v{V_LANE}'), I(f'v_xor_b32 v{t1}, v{t1}, v{t2}'),
              I(f'v_lshl_add_u32 v{t0}, v{t1}, 4, v{t0}')]
        assert self.stride % 128 == 0
        for q in range(self.nq):
            x = ((q & 3) << 1) if self.perm else 4 * (q & 1)
            c = 8 * q * self.stride - 1024 * (q & 3)
            assert c >= 0
            d = self.v_off + q
            if x == 0: o += [I(f'v_add_u32 v{d}, {c}, v{t0}')]
            elif not self.perm and q >= 2: o += [I(f'v_add_u32 v{d}, {c - (8 * self.stride - 1024)}, v{self.v_off + 1}')]
            else: o += [I(f'v_xor_b32 v{d}, {x << 4}, v{t0}'), I(f'v_add_u32 v{d}, {c}, v{d}')]
        if self.dyn: o += [I(f's_mov_b32 s{self.s_ws}, {self.slots[self.slot0] - self.lo}')]
        self._ndma = len(o)
        o += [I(f'v_and_b32 v{t0}, 15, v{V_LANE}'),
              I(f'v_lshrrev_b32 v{t1}, 1, v{t0}'),
              I(f'v_lshrrev_b32 v{t2}, 4, v{V_LANE}'),
              I(f'v_xor_b32 v{t1}, v{t1}, v{t2}')]
        if self.perm:
            o += [I(f'v_lshrrev_b32 v{t2}, 2, v{t0}'), I(f'v_lshlrev_b32 v{t2}, 3, v{t2}'),
                  I(f'v_and_b32 v{t0}, 3, v{t0}'), I(f'v_add_u32 v{t0}, v{t0}, v{t2}')]
        o += [I(f'v_add_u32 v{t0}, s{wave_row0}, v{t0}'),
              I(f'v_lshlrev_b32 v{t0}, 7, v{t0}'),
              I(f'v_lshl_add_u32 v{self.v_rd}, v{t1}, 4, v{t0}')]
        if self.lo:
            o += [I(f'v_add_u32 v{self.v_rd}, {self.lo}, v{self.v_rd}')]
        if self.dyn:
            o += [I(f'v_mov_b32 v{self.v_b}, v{self.v_rd}'), I(f's_mov_b32 s{self.s_rs}, {self.slots[self.slot0] - self.lo}')]
            if self.slots[self.slot0] != self.lo: o += [I(f'v_add_u32 v{self.v_rd}, s{self.s_rs}, v{self.v_b}')]
        o += [I(f'v_xor_b32 v{self.v_rd + 1}, 64, v{self.v_rd}')]
        for w in range(1, self.nwin):
            o += [I(f'v_add_u32 v{self.v_rd + 2 * w}, {65536 * w}, v{self.v_rd}'),
                  I(f'v_add_u32 v{self.v_rd + 2 * w + 1}, {65536 * w}, v{self.v_rd + 1}')]
        return o
    def reads(self, t, dst):
        gi = t // 2; ks = t % 2
        if self.dyn:
            o = []
            for i in range(self.nfr):
                o.append(I(f'ds_read_b128 {vr(dst + 4 * i, 4)}, v{self.v_rd + ks} offset:{16 * i * 128}', tag=('rd', t)))
            if ks == 1:
                span = len(self.slots) * self.gbytes
                o += [Grp([I(f's_add_u32 s{self.s_rs}, s{self.s_rs}, {self.gbytes}'), I(f's_cmp_lt_u32 s{self.s_rs}, {span}'),
                           I(f's_cselect_b32 s{self.s_rs}, s{self.s_rs}, 0')]),
                      I(f'v_add_u32 v{self.v_rd}, s{self.s_rs}, v{self.v_b}'), I(f'v_xor_b32 v{self.v_rd + 1}, 64, v{self.v_rd}')]
            return o
        slot = self.slots[(gi + self.slot0) % len(self.slots)] - self.lo
        win = slot // 65536; slot -= win * 65536
        o = []
        for i in range(self.nfr):
            ro = ((i // 2) * 32 + (i % 2) * 4) if self.perm else 16 * i
            off = slot + ro * 128
            assert off < 65536
            o.append(I(f'ds_read_b128 {vr(dst + 4 * i, 4)}, v{self.v_rd + 2 * win + ks} offset:{off}', tag=('rd', t)))
        return o

class OpT(OpBase):
    gran = 1
    def __init__(self, name, srd, stride, RB, nfr, slots, va, sa, cnat=False, slot0=0, ncol=None):
        self.name, self.srd, self.stride, self.RB, self.nfr, self.slots, self.cnat = name, srd, stride, RB, nfr, slots, cnat
        self.slot0 = slot0
        self.nq = 32 * RB // 1024 // 4
        self.nwin = (max(slots) + 32 * RB - 1 - min(slots)) // 65536 + 1
        self.v_off = va.get(self.nq); self.v_rd = va.get(nfr * self.nwin)
        self.s_wl = sa.get(); self.s_off = sa.get()
        self.ncol = ncol
        self.adv = 32 * stride
        self.gbytes = 32 * RB
    def voff(self, q): return self.v_off + q
    def setup(self, tmp, wave_p0):
        t0, t1, t2 = tmp, tmp + 1, tmp + 2
        RB = self.RB; CR = RB // 16; RI = 1024 // RB
        lgCR = CR.bit_length() - 1
        o = [I(f's_mul_i32 s{self.s_wl}, s{S_WAVE}, {8 * self.stride}'),
             I(f's_add_u32 s{self.s_off}, s{self.s_off}, s{self.s_wl}'),
             I(f's_mul_i32 s{self.s_wl}, s{S_WAVE}, {8 * RB}')]
        o += [I(f'v_lshrrev_b32 v{t0}, {lgCR}, v{V_LANE}'),
              I(f'v_and_b32 v{t1}, {CR - 1}, v{V_LANE}'),
              I(f'v_lshlrev_b32 v{t2}, 1, v{t0}'), I(f'v_xor_b32 v{t1}, v{t1}, v{t2}')]
        if not self.cnat:
            o += [I(f's_and_b32 s101, s{S_WAVE}, 1'), I(f's_lshl_b32 s101, s101, 3'), I(f'v_xor_b32 v{t1}, s101, v{t1}')]
        o += [I(f'v_lshlrev_b32 v{t1}, 4, v{t1}'), I(f'v_mul_u32_u24 v{t0}, {self.stride}, v{t0}')]
        for q in range(self.nq):
            d = self.v_off + q
            fq = (RI * q) & (7 if self.cnat else 3)
            c = RI * q * self.stride - 1024 * (q & 3)
            assert c >= 0
            if fq: o += [I(f'v_xor_b32 v{d}, {fq << 5}, v{t1}'), I(f'v_add_u32 v{d}, v{d}, v{t0}')]
            else: o += [I(f'v_add_u32 v{d}, v{t1}, v{t0}')]
            if c: o += [I(f'v_add_u32 v{d}, {c}, v{d}')]
            if self.ncol:
                o += [I(f'v_xor_b32 v{t2}, {fq << 5}, v{t1}'), I(f'v_cmp_gt_u32 vcc, {self.ncol * 2}, v{t2}'), I(f'v_mov_b32 v{t2}, 0x80000000'),
                      I(f'v_cndmask_b32 v{d}, v{t2}, v{d}, vcc')]
        self._ndma = len(o)
        o += [I(f'v_lshrrev_b32 v{t0}, 4, v{V_LANE}'),
              I(f'v_bfe_u32 v{t1}, v{V_LANE}, 2, 2'),
              I(f'v_lshl_add_u32 v{t2}, v{t0}, {2 if self.cnat else 3}, v{t1}'),
              I(f'v_and_b32 v{t0}, 1, v{t0}'),
              I(f'v_lshl_add_u32 v{t0}, v{t0}, 2, v{t1}'),
              I(f'v_lshlrev_b32 v{t0}, 5, v{t0}'),
              I(f'v_mul_u32_u24 v{t2}, {RB}, v{t2}'),
              I(f'v_and_b32 v{t1}, 3, v{V_LANE}'),
              I(f'v_lshl_add_u32 v{t2}, v{t1}, 3, v{t2}'),
              I(f'v_add_u32 v{t2}, {min(self.slots)}, v{t2}'),
              I(f's_lshl_b32 s101, s{wave_p0}, 5')]
        for j in range(self.nfr):
            d = self.v_rd + j
            o += [Grp([I(f'v_xad_u32 v{d}, s101, v{t0}, v{t2}'), I(f's_add_u32 s101, s101, 32')])]
            for w in range(1, self.nwin):
                o += [I(f'v_add_u32 v{d + w * self.nfr}, {65536 * w}, v{d}')]
        return o
    def reads(self, t, dst):
        slot = self.slots[(t + self.slot0) % len(self.slots)] - min(self.slots)
        win = slot // 65536; slot -= win * 65536
        o = []
        sec = (16 if self.cnat else 4) * self.RB
        for j in range(self.nfr):
            assert slot + sec < 65536
            o.append(I(f'ds_read_b64_tr_b16 {vr(dst + 4 * j, 2)}, v{self.v_rd + win * self.nfr + j} offset:{slot}', tag=('rd', t)))
            o.append(I(f'ds_read_b64_tr_b16 {vr(dst + 4 * j + 2, 2)}, v{self.v_rd + win * self.nfr + j} offset:{slot + sec}', tag=('rd', t)))
        return o

class OpF(OpBase):
    def __init__(self, name, srd, nwg, nfr, slots, va, sa, gran=1, adv=None, slot0=0):
        self.name, self.srd, self.nwg, self.nfr, self.slots, self.gran = name, srd, nwg, nfr, slots, gran
        self.slot0 = slot0
        self.nq = nwg * gran // 4
        self.step_adv = adv if adv is not None else nwg * 1024
        self.adv = self.step_adv * gran
        self.v_off = va.get(1 if (gran == 1 or self.step_adv == nwg * 1024) else self.nq); self.v_rd = va.get(1)
        self.s_wl = sa.get(); self.s_off = sa.get()
        self.gbytes = nwg * gran * 1024
        assert gran == 1 or self.step_adv == nwg * 1024
        assert self.nq <= 4, 'more than 4 per wave needs soffset bump'
    def voff(self, q): return self.v_off
    def setup(self, tmp, wave_f0):
        o = [I(f's_mul_i32 s{self.s_wl}, s{S_WAVE}, {self.nq * 1024}'),
             I(f's_add_u32 s{self.s_off}, s{self.s_off}, s{self.s_wl}'),
             I(f'v_lshlrev_b32 v{self.v_off}, 4, v{V_LANE}'),
             I(f's_lshl_b32 s101, s{wave_f0}, 10'),
             I(f's_add_u32 s101, s101, {min(self.slots)}'),
             I(f'v_add_u32 v{self.v_rd}, s101, v{self.v_off}')]
        return o
    def reads(self, t, dst):
        gi = t // self.gran; ks = t % self.gran
        slot = self.slots[(gi + self.slot0) % len(self.slots)] - min(self.slots)
        o = []
        for i in range(self.nfr):
            off = slot + (ks * self.nwg + i) * 1024
            assert off < 65536
            o.append(I(f'ds_read_b128 {vr(dst + 4 * i, 4)}, v{self.v_rd} offset:{off}', tag=('rd', t)))
        return o

class OpD:
    direct = True
    gran = 1
    def __init__(self, name, srd, nfr, D, base, adv, v_l16, sa, flags=''):
        self.name, self.srd, self.nfr, self.D, self.base, self.adv, self.v = name, srd, nfr, D, base, adv, v_l16
        self.s_off = sa.get(); self.flags = flags
        self.slots = list(range(D))
    def frag(self, t, i): return self.base + 4 * ((t % self.D) * self.nfr + i)
    def dma_all(self, gi):
        o = [I(f'buffer_load_dwordx4 {vr(self.frag(gi, i), 4)}, v{self.v}, {sr(self.srd,4)}, s{self.s_off} offen offset:{i * 1024} {self.flags}'.rstrip(), tag=(self.name, gi))
             for i in range(self.nfr)]
        return o + [I(f's_add_u32 s{self.s_off}, s{self.s_off}, {self.adv}')]
    def reads(self, t, dst): return []

def initial_dmas(ops, n, skip=(), upto=None):
    pro = []
    mx = max(len(op.slots) * op.gran for op in ops)
    if upto is not None: mx = min(mx, upto)
    for t in range(mx):
        for op in sorted(ops, key=lambda o: -o.gran):
            if t % op.gran == 0:
                gi = t // op.gran
                if gi < len(op.slots) and gi * op.gran < n and (op.name, gi) not in skip:
                    pro += op.dma_all(gi)
    return pro

def gemm_steps(opM, opN, n, fM, fN, acc, accp='a', bg=None, sync_pos=0.80, first_zero=True, issued=None, tail_bar=False, rd_end=None,
               dma_end=0.95, gs=1, mid=None):
    ops = (opM, opN)
    isd = lambda op: getattr(op, 'direct', False)
    lds = [op for op in ops if not isd(op)]
    ngr = {op.name: (n + op.gran - 1) // op.gran for op in ops}
    pro = expand(initial_dmas(ops, n, issued or ())) + (mid or [])
    need = lambda a, b: [(op.name, t // op.gran) for op in lds for t in range(a, min(b, n - 1) + 1)]
    dneed = lambda t: [(op.name, t) for op in ops if isd(op)]
    pro += [W_vm(need(0, gs)), I('s_barrier')]
    pro += expand(opM.reads(0, fM[0]) + opN.reads(0, fN[0]))
    pro += [I('s_waitcnt lgkmcnt(0)'), W_vm(dneed(0)), I('s_barrier')]
    nxt = {op.name: min(len(op.slots), ngr[op.name]) for op in ops}
    queue = []
    def release(upto):
        for op in sorted(lds, key=lambda o: -o.gran):
            while nxt[op.name] < ngr[op.name] and (nxt[op.name] - len(op.slots) + 1) * op.gran - 1 <= upto:
                d = op.dma_all(nxt[op.name]); nxt[op.name] += 1
                if op.nq == 8: queue.append([op.name, d[:5]]); queue.append([op.name + '+', d[5:]])
                else: queue.append([op.name, d])
    release(0)
    steps = []
    nm = opM.nfr * opN.nfr
    fr = lambda op, f, t, i: op.frag(t, i) if isd(op) else f[t % 2] + 4 * i
    for t in range(n):
        mf = []
        for i in range(opM.nfr):
            for j in range(opN.nfr):
                d = vr(acc(i, j), 4, accp)
                c = '0' if (t == 0 and first_zero) else d
                mf.append(I(f'v_mfma_f32_16x16x32_bf16 {d}, {vr(fr(opM, fM, t, i), 4)}, {vr(fr(opN, fN, t, j), 4)}, {c}'))
        side = []
        dm = []
        left = gs - (t % gs)
        if gs == 1:
            deep = lambda nme: any(op.name == nme[:-1] and len(op.slots) >= 3 for op in lds)
            take = [c for k, c in enumerate(queue) if not (c[0].endswith('+') and deep(c[0]) and any(x[0] == c[0][:-1] for x in queue[:k]))]
        else:
            take = queue[:(len(queue) + left - 1) // left]
        for c in take: dm += c[1]; queue.remove(c)
        for op in ops:
            if isd(op) and t >= 1 and nxt[op.name] < n:
                dm += op.dma_all(nxt[op.name]); nxt[op.name] += 1
        rd = []
        if t + 1 < n:
            rd = opM.reads(t + 1, fM[(t + 1) % 2]) + opN.reads(t + 1, fN[(t + 1) % 2])
        sp = sync_pos * nm
        side += spread(rd, 0, rd_end if rd_end is not None else sp - min(6, 0.2 * nm))
        side += spread(dm, 0, dma_end * nm)
        if t + 1 < n:
            s = [I('s_waitcnt lgkmcnt(0)')]
            isbar = (t % gs == gs - 1)
            if isbar and t + 2 < n: s += [W_vm(need(t + 2, t + 1 + gs)), I('s_barrier')]; release(t + 1)
            elif tail_bar and t + 2 >= n: s += [I('s_barrier')]
            for x in s: x.pos = sp
            side += s
            w = W_vm(dneed(t + 1)); w.pos = nm - 0.4; w.pin = True
            if dneed(t + 1): side.append(w)
        if bg: side += bg(t)
        steps.append(weave(mf, side))
    assert not queue
    return pro, steps

def chop(stream, t0, t1, nm, lo=0.0, hi=1.0):
    tot = sum(max(i.cost, 1) for i in stream)
    nst = t1 - t0
    out = {t: [] for t in range(t0, t1)}
    acc = 0
    for i in stream:
        f = acc / tot * nst
        t = min(int(f), nst - 1)
        i.pos = (lo + (hi - lo) * (f - t)) * nm
        out[t0 + t].append(i)
        acc += max(i.cost, 1)
    return out

class BG:
    def __init__(self): self.d = {}
    def add(self, dd):
        for t, l in dd.items(): self.d.setdefault(t, []).extend(l)
    def at(self, t, lst, p0, p1):
        self.d.setdefault(t, []).extend(spread(lst, p0, p1))
    def __call__(self, t): return self.d.get(t, [])

def finish_multi(parts):
    flat = []
    for k, p in enumerate(parts):
        flat.append(I(f'; part {k}', 'dir'))
        if p[0] == 'lin': flat += p[1]
        else:
            for t, s in enumerate(p[1]):
                flat.append(I(f'; step {t}', 'dir')); flat += s
    check_m0(flat)
    flat = resolve_waits(flat)
    out = []; cur = None; k = -1
    groups = []
    for i in flat:
        if i.kind == 'dir' and i.t.startswith('; part'):
            k += 1; groups.append([] if parts[k][0] == 'steps' else [[]]); continue
        if i.kind == 'dir' and i.t.startswith('; step'):
            groups[-1].append([]); continue
        groups[-1][-1].append(i)
    for k, p in enumerate(parts):
        if p[0] == 'lin': out += groups[k][0]
        else: out += roll(groups[k], p[2], p[3], p[4])
    return out

def finish(pro, steps, post, U, label, cnt, vm_out=None):
    flat = list(pro)
    for t, s in enumerate(steps):
        flat.append(I(f'; step {t}', 'dir')); flat += s
    flat.append(I('; endsteps', 'dir'))
    flat += post
    flat = resolve_waits(flat, vm_out)
    p2 = []; st = []; po = []; cur = p2
    for i in flat:
        if i.kind == 'dir' and i.t.startswith('; step'):
            st.append([]); cur = st[-1]; continue
        if i.kind == 'dir' and i.t == '; endsteps':
            cur = po; continue
        cur.append(i)
    return p2 + roll(st, U, label, cnt) + po
```

```python
from common import *
import math, struct

def f2h(x): return '0x%08x' % struct.unpack('<I', struct.pack('<f', x))[0]
LOG2E = 1.4426950408889634
QSCALE = LOG2E / 16.0
K = 1024

class Cfg:
    stf = ''
    weave_z = True
    weave_kv = True
    diag = False
    only = None
    out_oob = True
    pf = True

SRD_XX, SRD_WIN, SRD_CKV, SRD_WKV, SRD_WQ, SRD_DBG = 4, 8, 16, 52, 56, 60
S_XCD, S_C, S_MT, S_HEAD, S_SEL, S_TB = 64, 65, 66, 67, 68, 69
OOB = 0x80000000

def dpp_add(d, s, ctrl): return I(f'v_add_f32_dpp v{d}, v{s}, v{s} {ctrl} row_mask:0xf bank_mask:0xf')

def gelu_stream(regs_, tmps, vc1):
    c0 = -2.0 * LOG2E * math.sqrt(2.0 / math.pi)
    o = []
    G = len(tmps)
    for a in range(0, len(regs_), G):
        grp = list(zip(regs_[a:a + G], tmps))
        o += [I(f'v_mul_f32 v{t}, v{x}, v{x}') for x, t in grp]
        o += [I(f'v_fmaak_f32 v{t}, v{vc1}, v{t}, {f2h(c0)}') for x, t in grp]
        o += [I(f'v_mul_f32 v{t}, v{x}, v{t}') for x, t in grp]
        o += [I(f'v_exp_f32 v{t}, v{t}') for x, t in grp]
        o += [I(f'v_add_f32 v{t}, 1.0, v{t}') for x, t in grp]
        o += [I(f'v_rcp_f32 v{t}, v{t}') for x, t in grp]
        o += [I(f'v_mul_f32 v{x}, v{x}, v{t}') for x, t in grp]
    return o

def gate_code(tmp):
    x0, x1, gw, a0, a1, t0, t1, vo = tmp, tmp + 4, tmp + 8, tmp + 12, tmp + 13, tmp + 14, tmp + 15, tmp + 12
    iss = [I(f's_lshl_b32 s{S_GATE}, s2, 3'), I(f's_lshl_b32 s101, s{S_WAVE}, 1'), I(f's_add_u32 s{S_GATE}, s{S_GATE}, s101'),
            I(f's_mul_i32 s101, s{S_GATE}, 896'),
            I(f'v_lshlrev_b32 v{vo}, 4, v{V_LANE}'),
            I(f'v_mov_b32 v{t0}, {OOB}'), I(f'v_cmp_gt_u32 vcc, 56, v{V_LANE}'), I(f'v_cndmask_b32 v{vo}, v{t0}, v{vo}, vcc'),
            I(f'buffer_load_dwordx4 {vr(gw,4)}, v{vo}, {sr(SRD_GW,4)}, 0 offen', tag='gate'),
            I(f'buffer_load_dwordx4 {vr(x0,4)}, v{vo}, {sr(SRD_XX,4)}, s101 offen', tag='gate'),
            I(f'buffer_load_dwordx4 {vr(x1,4)}, v{vo}, {sr(SRD_XX,4)}, s101 offen offset:896', tag='gate'),
            I(f's_lshl_b32 s{S_GATE}, s{S_GATE}, 2'), I(f's_add_u32 s{S_GATE}, s{S_GATE}, {GATE}')]
    iss += [I(f'v_lshl_add_u32 v{t0}, s{S_WAVE}, 10, v{vo}'), I(f'v_cmp_gt_u32 vcc, 256, v{t0}'), I(f'v_mov_b32 v{t1}, {OOB}'),
            I(f's_lshl_b32 s101, s2, 8'), I(f'v_cndmask_b32 v{t0}, v{t1}, v{t0}, vcc'), I(f'v_mov_b32 v{t1}, 0'), I(f's_add_u32 s101, s101, {FLG}'),
            I(f'buffer_store_dword v{t1}, v{t0}, {sr(SRD_WS,4)}, s101 offen', tag='flg')]
    fin = [W_vm('gate'), I(f'v_mov_b32 v{a0}, 0'), I(f'v_mov_b32 v{a1}, 0')]
    for k in range(4):
        for (hi, op) in ((0, 'v_lshlrev_b32 v{d}, 16, v{s}'), (1, 'v_and_b32 v{d}, 0xffff0000, v{s}')):
            fin += [I(op.format(d=t0, s=gw + k)), I(op.format(d=t1, s=x0 + k)), I(f'v_fmac_f32 v{a0}, v{t0}, v{t1}'),
                    I(op.format(d=t1, s=x1 + k)), I(f'v_fmac_f32 v{a1}, v{t0}, v{t1}')]
    for c in ('row_ror:8', 'row_ror:4', 'row_ror:2', 'row_ror:1'):
        fin += [dpp_add(a0, a0, c), dpp_add(a1, a1, c)]
    for sw in ('v_permlane16_swap_b32', 'v_permlane32_swap_b32'):
        fin += [I(f'v_mov_b32 v{t0}, v{a0}'), I(f'v_mov_b32 v{t1}, v{a1}'),
                I(f'{sw} v{a0}, v{t0}'), I(f'{sw} v{a1}, v{t1}'),
                I(f'v_add_f32 v{a0}, v{a0}, v{t0}'), I(f'v_add_f32 v{a1}, v{a1}, v{t1}')]
    for a in (a0, a1):
        fin += [I(f'v_mul_f32 v{a}, {f2h(-LOG2E)}, v{a}'), I(f'v_exp_f32 v{a}, v{a}'), I(f'v_add_f32 v{a}, 1.0, v{a}'), I(f'v_rcp_f32 v{a}, v{a}')]
    fin += [I(f'v_mov_b32 v{t0}, {OOB}'), I(f'v_cmp_eq_u32 vcc, 0, v{V_LANE}'), I(f'v_cndmask_b32 v{t0}, v{t0}, 0, vcc'),
            I(f'buffer_store_dwordx2 {vr(a0,2)}, v{t0}, {sr(SRD_WS,4)}, s{S_GATE} offen', tag='gst')]
    return iss, fin
SRD_GW = 40
SRD_PF = 44
SRD_C = 96
S_GATE = 70

def variant(isV, cfg, ST):
    nm = 'V' if isV else 'K'
    sa = Alloc(71, 74)
    s_wm, s_wn, s_t = sa.get(), sa.get(), sa.get()
    sa2 = Alloc(20, 40)
    vq = Alloc(2, 20); vkv = Alloc(20, 43); vz = Alloc(43, 63)
    V_L16 = 0
    ZX = OpR('zx', SRD_XX, 896, 128, 2, [96 * K + 16 * K * i for i in range(4)], vz, sa2, perm=isV)
    ZW = OpT('zw', SRD_WIN, 3584, 256, 7, [32 * K + 8 * K * i for i in range(8)], vz, sa2)
    A = OpR('A', SRD_CKV, 2048, 256, 8, [0, 32 * K, 64 * K], vkv, sa2, dyn=True)
    B = OpT('B', SRD_WKV, 8192, 512, 8, [96 * K + 16 * K * i for i in range(4)], vkv, sa2, slot0=3)
    QX = OpR('qx', SRD_XX, 896, 256, 8, [32 * K, 64 * K, 0], vq, sa2)
    QW = OpT('qw', SRD_WQ, 8192, 256, 4, [96 * K + 8 * K * i for i in range(8)], vq, sa2, slot0=6)
    s_cnt, s_st, s_st2, s_zst, s_sst, s_poll = [sa2.get() for _ in range(6)]
    TMP = 248
    o = []
    o += srd(SRD_WKV, P_WUV if isV else P_WUK, 1024 * 8192) + srd(SRD_WQ, P_WQ, 448 * 8192) + srd(SRD_GW, P_GW, 896)
    o += srd(SRD_PF, P_WSP, 2048 * 4096)
    giss, gfin = gate_code(224)
    o += [I(f's_mul_i32 s{ZX.s_off}, s{S_TB}, {128 * 896}'),
          I(f's_mul_i32 s{ZW.s_off}, s{S_XCD}, 224')]
    if isV: o += [I(f's_add_u32 s{ZW.s_off}, s{ZW.s_off}, 1792')]
    zx_s = ZX.setup(TMP, s_t); o += zx_s[:ZX._ndma]
    zw_s = ZW.setup(TMP, s_cnt); o += zw_s[:ZW._ndma]
    o += initial_dmas((ZX, ZW), 14, upto=2)
    if cfg.pf: o += touch_code(SRD_C, cfg.name, cfg.name + '_stop', 255, s_st)
    o += initial_dmas((ZX, ZW), 14, skip={('zx', 0), ('zw', 0), ('zw', 1)})
    o += ST.mark('dma0')
    o += [I(f's_lshl_b32 s{s_t}, s{S_WAVE}, 5')]
    o += zx_s[ZX._ndma:] + [I(f's_mov_b32 s{s_cnt}, 0')] + zw_s[ZW._ndma:]
    o += [I(f's_lshr_b32 s{s_wm}, s{S_WAVE}, 1'), I(f's_and_b32 s{s_wn}, s{S_WAVE}, 1')]
    o += [I(f's_lshl_b32 s{A.s_off}, s{S_MT}, 19'), I(f's_lshl_b32 s{B.s_off}, s{S_HEAD}, 9'), I(f'v_lshlrev_b32 v{V_L16}, 4, v{V_LANE}')]
    s_tok, s_w = (s_wm, s_wn) if isV else (s_wn, s_wm)
    o += [I(f's_lshl_b32 s{s_t}, s{s_tok}, 7')] + A.setup(TMP, s_t)
    o += [I(f's_lshl_b32 s{s_t}, s{s_w}, 3')] + B.setup(TMP, s_t)
    o = expand(o)
    qs = [I(f's_mul_i32 s{QX.s_off}, s{S_MT}, {256 * 896}'), I(f's_lshl_b32 s{QW.s_off}, s{S_HEAD}, 9')]
    if isV: qs += [I(f's_add_u32 s{QW.s_off}, s{QW.s_off}, 256')]
    qs += [I(f's_lshl_b32 s{s_t}, s{s_wn}, 7')] + QX.setup(TMP, s_t)
    qs += [I(f's_lshl_b32 s{s_t}, s{s_wm}, 2')] + QW.setup(TMP, s_t)
    qs = [Grp([i, j]) if False else i for i, j in zip(qs, qs)]
    o += ST.mark('setup')
    ZA = 192
    if isV: zacc = lambda i, j: ZA + 4 * (i * 7 + j); zM, zN = ZX, ZW; fM, fN = (64, 100), (72, 108)
    else:   zacc = lambda i, j: ZA + 4 * (i * 2 + j); zM, zN = ZW, ZX; fM, fN = (72, 108), (64, 100)
    bgz = BG()
    a0 = A.dma_all(0)
    bgz.at(6, a0[:5], 0, 10); bgz.at(7, a0[5:], 0, 10)
    bgz.at(8, B.dma_all(0), 0, 10); bgz.at(10, B.dma_all(1), 0, 10)
    a1 = A.dma_all(1)
    bgz.at(12, a1[:5] + [], 0, 10); bgz.at(13, a1[5:] + B.dma_all(2), 0, 13)
    zall = {(ZX.name, g) for g in range(4)} | {(ZW.name, g) for g in range(8)}
    zpro, zsteps = gemm_steps(zM, zN, 14, fM, fN, zacc, accp='v', bg=bgz, issued=zall, tail_bar=True, sync_pos=0.85, rd_end=9)
    VC1 = 63
    zregs = [ZA + r for r in range(56)]
    ze = [I(f'v_mov_b32 v{VC1}, {f2h(-2.0 * LOG2E * math.sqrt(2.0 / math.pi) * 0.044715)}')]
    ze += gelu_stream(zregs, [TMP + i for i in range(4)], VC1)
    ln = []
    spin = []
    if not isV:
        ze += [I(f's_lshl_b32 s{s_zst}, s{S_TB}, 3'), I(f's_lshl_b32 s{s_t}, s{S_WAVE}, 1'), I(f's_add_u32 s{s_zst}, s{s_zst}, s{s_t}'),
               I(f's_mul_i32 s{s_zst}, s{s_zst}, 56'), I(f's_mul_i32 s{s_t}, s{S_XCD}, 7'), I(f's_add_u32 s{s_zst}, s{s_zst}, s{s_t}'),
               I(f's_lshl_b32 s{s_zst}, s{s_zst}, 9'), I(f's_add_u32 s{s_zst}, s{s_zst}, {Z1F}'),
               I(f'v_lshlrev_b32 v{TMP+4}, 3, v{V_LANE}')]
        for j in range(2):
            for i in range(7):
                r = zacc(i, j)
                ze += [I(f'v_cvt_pk_bf16_f32 v{r}, v{r}, v{r+1}'), I(f'v_cvt_pk_bf16_f32 v{r+1}, v{r+2}, v{r+3}'),
                       I(f'buffer_store_dwordx2 {vr(r,2)}, v{TMP+4}, {sr(SRD_WS,4)}, s{s_zst} offen offset:{i*512} {cfg.stf}'.rstrip(), tag='z1')]
            if j == 0: ze += [I(f's_add_u32 s{s_zst}, s{s_zst}, {56*512}')]
    else:
        M = 44
        tok = [(i, r) for i in range(2) for r in range(4)]
        for j in range(1, 7):
            for k, (i, r) in enumerate(tok):
                src = zacc(i, 0) + r if j == 1 else M + 2 * k
                ze += [I(f'v_add_f32 v{M+2*k}, v{src}, v{zacc(i,j)+r}')]
        for c in ('row_ror:8', 'row_ror:4', 'row_ror:2', 'row_ror:1'):
            ze += [dpp_add(M + 2 * k, M + 2 * k, c) for k in range(8)]
        ze += [I(f'v_mul_f32 v{M+2*k}, {f2h(1.0/112)}, v{M+2*k}') for k in range(8)]
        for j in range(7):
            for h in range(2):
                ks = list(range(4 * h, 4 * h + 4))
                ze += [I(f'v_sub_f32 v{TMP+(k&3)}, v{zacc(tok[k][0],j)+tok[k][1]}, v{M+2*k}') for k in ks]
                if j == 0: ze += [I(f'v_mul_f32 v{M+2*k+1}, v{TMP+(k&3)}, v{TMP+(k&3)}') for k in ks]
                else: ze += [I(f'v_fmac_f32 v{M+2*k+1}, v{TMP+(k&3)}, v{TMP+(k&3)}') for k in ks]
        for c in ('row_ror:8', 'row_ror:4', 'row_ror:2', 'row_ror:1'):
            ze += [dpp_add(M + 2 * k + 1, M + 2 * k + 1, c) for k in range(8)]
        VS = TMP + 4
        ze += [I(f's_lshl_b32 s{s_sst}, s{S_TB}, 7'), I(f's_lshl_b32 s{s_t}, s{S_WAVE}, 5'), I(f's_add_u32 s{s_sst}, s{s_sst}, s{s_t}'),
               I(f's_lshl_b32 s{s_sst}, s{s_sst}, 3'), I(f's_add_u32 s{s_sst}, s{s_sst}, {STATS}'),
               I(f's_lshl_b32 s{s_t}, s{S_XCD}, 14'), I(f's_add_u32 s{s_zst}, s{s_sst}, s{s_t}'),
               I(f'v_lshrrev_b32 v{VS}, 4, v{V_LANE}'), I(f'v_lshlrev_b32 v{VS}, 6, v{VS}'),
               I(f'v_and_b32 v{VS+1}, 15, v{V_LANE}'), I(f'v_cmp_eq_u32 vcc, 0, v{VS+1}'),
               I(f'v_mov_b32 v{VS+1}, {OOB}'), I(f'v_cndmask_b32 v{VS+1}, v{VS+1}, v{VS}, vcc')]
        for q in range(4):
            ze += [I(f'buffer_store_dwordx4 {vr(M+4*q,4)}, v{VS+1}, {sr(SRD_WS,4)}, s{s_zst} offen offset:{16*q} sc1', tag='stat')]
        for j in range(7):
            r0, r1 = zacc(0, j), zacc(1, j)
            ze += [I(f'v_cvt_pk_bf16_f32 v{r0}, v{r0}, v{r0+1}'), I(f'v_cvt_pk_bf16_f32 v{r0+1}, v{r0+2}, v{r0+3}'),
                   I(f'v_cvt_pk_bf16_f32 v{r0+2}, v{r1}, v{r1+1}'), I(f'v_cvt_pk_bf16_f32 v{r0+3}, v{r1+2}, v{r1+3}')]
        sig_pre = [I(f'v_lshl_add_u32 v{VS}, s{S_WAVE}, 6, v{V_LANE}'), I(f'v_cmp_eq_u32 vcc, 0, v{VS}'),
                   I(f's_lshl_b32 s{s_poll}, s{S_TB}, 2'),
                   I(f'v_mov_b32 v{VS}, {OOB}'), I(f'v_cndmask_b32 v{VS}, v{VS}, 0, vcc'), I(f'v_mov_b32 v{VS+1}, 1'), W_vm('stat')]
        sig_post = [I(f'buffer_atomic_add v{VS+1}, v{VS}, {sr(SRD_DBG,4)}, s{s_poll} offen', tag='sig')]
        L = 44
        F = zacc(1, 0)
        ln += [I(f'v_mov_b32 v{VS}, 0'),
               I(f'buffer_load_dword v{VS+1}, v{VS}, {sr(SRD_DBG,4)}, s{s_poll} offen sc1', tag='poll'),
               I(f'v_and_b32 v{VS+2}, 7, v{V_LANE}'), I(f'v_lshlrev_b32 v{VS+2}, 14, v{VS+2}'),
               I(f'v_lshrrev_b32 v{VS+3}, 3, v{V_LANE}'), I(f'v_lshl_add_u32 v{VS+2}, v{VS+3}, 5, v{VS+2}'),
               W_vm('poll'), Grp([I(f'v_readfirstlane_b32 s{s_t}, v{VS+1}'), I(f's_cmp_ge_u32 s{s_t}, 8'), I('s_cbranch_scc0 L1_spin'), I('L1_spin_ret:')])]
        spin = [I('L1_spin:'), I('s_sleep 2'), I(f'buffer_load_dword v{VS+1}, v{VS}, {sr(SRD_DBG,4)}, s{s_poll} offen sc1'), I('s_waitcnt vmcnt(0)'),
                I(f'v_readfirstlane_b32 s{s_t}, v{VS+1}'), I(f's_cmp_ge_u32 s{s_t}, 8'), I('s_cbranch_scc0 L1_spin'), I('s_branch L1_spin_ret')]
        ln += [I(f'buffer_load_dwordx4 {vr(F,4)}, v{VS+2}, {sr(SRD_WS,4)}, s{s_sst} offen sc1', tag='ld_stat'),
               I(f'buffer_load_dwordx4 {vr(F+4,4)}, v{VS+2}, {sr(SRD_WS,4)}, s{s_sst} offen offset:16 sc1', tag='ld_stat'),
               I(f'; gap', 'dir')]
        ln2 = [W_vm('ld_stat')]
        MU = F + 8; Q2 = F + 12
        red = ('quad_perm:[1,0,3,2]', 'quad_perm:[2,3,0,1]', 'row_half_mirror')
        ln2 += [dpp_add(MU + k, F + 2 * k, red[0]) for k in range(4)]
        for c in red[1:]: ln2 += [dpp_add(MU + k, MU + k, c) for k in range(4)]
        ln2 += [I(f'v_mul_f32 v{MU+k}, 0.125, v{MU+k}'.replace('0.125', f2h(0.125))) for k in range(4)]
        ln2 += [I(f'v_sub_f32 v{Q2+k}, v{F+2*k}, v{MU+k}') for k in range(4)]
        ln2 += [I(f'v_mul_f32 v{Q2+k}, v{Q2+k}, v{Q2+k}') for k in range(4)]
        ln2 += [I(f'v_fmamk_f32 v{Q2+k}, v{Q2+k}, {f2h(112.0)}, v{F+2*k+1}') for k in range(4)]
        for c in red: ln2 += [dpp_add(Q2 + k, Q2 + k, c) for k in range(4)]
        ln2 += [I(f'v_mul_f32 v{Q2+k}, {f2h(1.0/896)}, v{Q2+k}') for k in range(4)]
        ln2 += [I(f'v_add_f32 v{Q2+k}, {f2h(1e-5)}, v{Q2+k}') for k in range(4)]
        ln2 += [I(f'v_rsq_f32 v{Q2+k}, v{Q2+k}') for k in range(4)]
        ln2 += [I(f'v_mul_f32 v{MU+k}, v{MU+k}, v{Q2+k}') for k in range(4)]
        for src, hi in ((Q2, L), (MU, L + 4)):
            ln2 += [I(f'v_mov_b32 v{hi+k}, v{src+k}') for k in range(4)]
            ln2 += [I(f'v_mov_b32_dpp v{hi+k}, v{src+k} row_ror:8 row_mask:0xf bank_mask:0x3') for k in range(4)]
            ln2 += [I(f'v_mov_b32_dpp v{src+k}, v{src+k} row_ror:8 row_mask:0xf bank_mask:0xc') for k in range(4)]
        rs = lambda k: Q2 + k if k < 4 else L + k - 4
        mr = lambda k: MU + k if k < 4 else L + 4 + k - 4
        ln2 += [I(f's_lshl_b32 s{s_zst}, s{S_TB}, 2'), I(f's_add_u32 s{s_zst}, s{s_zst}, s{S_WAVE}'), I(f's_mul_i32 s{s_zst}, s{s_zst}, 56'),
                I(f's_mul_i32 s{s_t}, s{S_XCD}, 7'), I(f's_add_u32 s{s_zst}, s{s_zst}, s{s_t}'), I(f's_lshl_b32 s{s_zst}, s{s_zst}, 10'),
                I(f's_add_u32 s{s_zst}, s{s_zst}, {Z2NF}')]
        for j in range(7):
            r0 = zacc(0, j)
            for h in range(2):
                ds_ = (2 * h, 2 * h + 1)
                for d in ds_:
                    ln2 += [I(f'v_lshlrev_b32 v{TMP+2*(d&1)}, 16, v{r0+d}'), I(f'v_and_b32 v{TMP+2*(d&1)+1}, 0xffff0000, v{r0+d}')]
                for d in ds_:
                    ln2 += [I(f'v_fma_f32 v{TMP+2*(d&1)}, v{TMP+2*(d&1)}, v{rs(2*d)}, -v{mr(2*d)}'),
                            I(f'v_fma_f32 v{TMP+2*(d&1)+1}, v{TMP+2*(d&1)+1}, v{rs(2*d+1)}, -v{mr(2*d+1)}')]
                for d in ds_:
                    ln2 += [I(f'v_cvt_pk_bf16_f32 v{r0+d}, v{TMP+2*(d&1)}, v{TMP+2*(d&1)+1}')]
            ln2 += [I(f'buffer_store_dwordx4 {vr(r0,4)}, v{V_L16}, {sr(SRD_WS,4)}, s{s_zst} offen offset:{(j%4)*1024} {cfg.stf}'.rstrip(), tag='z2n')]
            if j == 3: ln2 += [I(f's_add_u32 s{s_zst}, s{s_zst}, 4096')]
    bgkv = BG()
    pre_kv = []
    NH = 8
    if cfg.weave_z: bgkv.add(chop(ze, 0, NH, 64))
    else: pre_kv += [I('s_nop 7')] + ze
    if isV:
        bgkv.at(NH + 1, sig_pre, 32, 50); bgkv.at(NH + 2, sig_post, 1, 2)
        bgkv.at(24, ln, 0, 40)
        bgkv.add(chop(ln2, 25, 29, 64))
    bgkv.at(NH, giss, 0, 30); bgkv.at(NH, qs, 31, 63)
    bgkv.add(chop(gfin, NH + 1, NH + 3, 64, 0.05, 0.45))
    qx0 = QX.dma_all(0)
    bgkv.at(28, qx0 + QW.dma_all(0) + QW.dma_all(1), 0, 45)
    bgkv.at(29, QX.dma_all(1) + QW.dma_all(2) + QW.dma_all(3), 0, 45)
    bgkv.at(30, QW.dma_all(4) + QW.dma_all(5), 0, 30)
    bgkv.at(31, QX.dma_all(2) + QW.dma_all(6) + QW.dma_all(7), 0, 45)
    acc = lambda i, j: 4 * (i * 8 + j)
    opM, opN = (A, B) if isV else (B, A)
    kvissued = {('A', 0), ('A', 1), ('B', 0), ('B', 1), ('B', 2)}
    kpro, ksteps = gemm_steps(opM, opN, 32, (64, 128), (96, 160), acc, bg=bgkv, issued=kvissued, tail_bar=True)
    if cfg.pf:
        i = [k for k, x in enumerate(kpro) if x.kind == 'pwait'][0]
        kpro = kpro[:i] + touch_buf(SRD_WQ, 255, s_st, 14) + kpro[i:]
    DT = 20
    dr = []
    if not isV:
        dr += [I(f's_lshl_b32 s{s_st}, s{S_HEAD}, 7'), I(f's_lshl_b32 s{s_t}, s{S_MT}, 4'), I(f's_add_u32 s{s_st}, s{s_st}, s{s_t}'),
               I(f's_lshl_b32 s{s_t}, s{s_wn}, 3'), I(f's_add_u32 s{s_st}, s{s_st}, s{s_t}'), I(f's_lshl_b32 s{s_st}, s{s_st}, 3'),
               I(f's_lshl_b32 s{s_t}, s{s_wm}, 2'), I(f's_add_u32 s{s_st}, s{s_st}, s{s_t}'), I(f's_lshl_b32 s{s_st}, s{s_st}, 10')]
        for j in range(8):
            for p in range(4):
                src = [acc(2 * p, j) + r for r in range(4)] + [acc(2 * p + 1, j) + r for r in range(4)]
                dr += pack_store(src, 'a', DT, V_L16, s_st, p * 1024, flags=cfg.stf)
            dr += [I(f's_add_u32 s{s_st}, s{s_st}, 8192')]
    else:
        dr += [I(f's_lshl_b32 s{s_st}, s{S_HEAD}, 6'), I(f's_lshl_b32 s{s_t}, s{S_MT}, 3'), I(f's_add_u32 s{s_st}, s{s_st}, s{s_t}'),
               I(f's_lshl_b32 s{s_t}, s{s_wm}, 2'), I(f's_add_u32 s{s_st}, s{s_st}, s{s_t}'), I(f's_lshl_b32 s{s_st}, s{s_st}, 4'),
               I(f's_lshl_b32 s{s_t}, s{s_wn}, 3'), I(f's_add_u32 s{s_st}, s{s_st}, s{s_t}'), I(f's_lshl_b32 s{s_st}, s{s_st}, 10'),
               I(f's_add_u32 s{s_st}, s{s_st}, {VF}')]
        for p in range(4):
            for j in range(8):
                src = [acc(2 * p, j) + r for r in range(4)] + [acc(2 * p + 1, j) + r for r in range(4)]
                dr += pack_store(src, 'a', DT, V_L16, s_st, (j % 4) * 1024, flags=cfg.stf)
                if j == 3: dr += [I(f's_add_u32 s{s_st}, s{s_st}, 4096')]
            dr += [I(f's_add_u32 s{s_st}, s{s_st}, {16384 - 4096}')]
    bgq = BG()
    pre_q = []
    if cfg.weave_kv: bgq.add(chop(dr, 0, 14, 32))
    else: pre_q += [I('s_nop 7')] + dr
    qacc = lambda i, j: 128 + 4 * (i * 8 + j)
    qissued = {('qx', g) for g in range(3)} | {('qw', g) for g in range(8)}
    qpro, qsteps = gemm_steps(QW, QX, 14, (32, 80), (48, 96), qacc, accp='v', bg=bgq, issued=qissued)
    post = [I(f's_lshl_b32 s{s_st2}, s{S_HEAD}, 7'), I(f's_lshl_b32 s{s_t}, s{S_MT}, 4'), I(f's_add_u32 s{s_st2}, s{s_st2}, s{s_t}'),
            I(f's_lshl_b32 s{s_t}, s{s_wn}, 3'), I(f's_add_u32 s{s_st2}, s{s_st2}, s{s_t}'), I(f's_lshl_b32 s{s_st2}, s{s_st2}, 3'),
            I(f's_lshl_b32 s{s_t}, s{s_wm}, 1'), I(f's_add_u32 s{s_st2}, s{s_st2}, s{s_t}'), I(f's_lshl_b32 s{s_st2}, s{s_st2}, 10'),
            I(f's_add_u32 s{s_st2}, s{s_st2}, {QF + (4096 if isV else 0)}')]
    if cfg.pf:
        post = touch_buf(SRD_PF, 31, s_st, 15) + touch_code(SRD_C, 'l2_kernel', 'out_kernel_stop', 30, s_st, per_xcd=False) + post
    k = 0
    for j in range(8):
        for p in range(2):
            src = [qacc(2 * p, j) + r for r in range(4)] + [qacc(2 * p + 1, j) + r for r in range(4)]
            post += pack_store(src, 'v', 32 + 12 * (k % 4), V_L16, s_st2, p * 1024, scale=f2h(QSCALE), flags=cfg.stf); k += 1
        post += [I(f's_add_u32 s{s_st2}, s{s_st2}, 8192')]
    p0 = ('lin', o + zpro + ST.mark('zpro'))
    p2 = ('lin', ST.mark('zend') + pre_kv + kpro + ST.mark('kpro'))
    for t in range(32): ksteps[t] = ST.mark(f'xk{t}') + ksteps[t]
    p4 = ('lin', ST.mark('kend') + pre_q + qpro + ST.mark('qpro'))
    for t in range(14): qsteps[t] = ST.mark(f'xq{t}') + qsteps[t]
    p6 = ('lin', ST.mark('qend') + post + (ST.mark('post') + [I('s_waitcnt vmcnt(0)')] + ST.mark('drain') if cfg.diag else []))
    parts = [p0, ('steps', zsteps, 99, 'x', 0), p2, ('steps', ksteps, 4, f'L1_{nm}_loop', s_cnt), p4, ('steps', qsteps, 99, 'x', 0), p6]
    return finish_multi(parts), spin

def kernel_l1(name='l1_kernel', cfg=Cfg()):
    cfg.name = name
    ST = Stamps(cfg.diag, 74, cfg.only or ['start', 'dma0', 'zpro', 'zend', 'kpro', 'kend', 'qend', 'post', 'drain'])
    o = kernel_head(name, 256) + ST.rt() + ST.mark('start')
    o += srd(SRD_XX, P_X, 2048 * 896) + srd(SRD_WIN, P_WIN, 448 * 3584) + srd(SRD_CKV, P_CKV, 2048 * 2048) + srd(SRD_DBG, P_DBG, 256)
    o += [I(f's_and_b32 s{S_XCD}, s2, 7'), I(f's_lshr_b32 s{S_C}, s2, 3'),
          I(f's_and_b32 s{S_MT}, s{S_C}, 7'), I(f's_lshr_b32 s{S_SEL}, s{S_C}, 3'),
          I(f's_and_b32 s{S_HEAD}, s{S_SEL}, 1'), I(f's_lshl_b32 s{S_TB}, s{S_MT}, 1'), I(f's_add_u32 s{S_TB}, s{S_TB}, s{S_HEAD}'),
          I(f's_lshl_b32 s100, s{S_XCD}, 1'), I(f's_add_u32 s{S_HEAD}, s{S_HEAD}, s100'),
          I(f's_cmp_ge_u32 s{S_SEL}, 2'), I('s_cbranch_scc1 L1_V')]
    a, _ = variant(False, cfg, ST)
    b, spin = variant(True, cfg, ST)
    o += a + [I('s_branch L1_done'), I('L1_V:')] + b + [I('L1_done:')] + ST.rt() + ST.dump()
    o += kernel_tail(name) + spin + kernel_stop(name)
    return fix_hazards(ST.finalize(o, name))

if __name__ == '__main__':
    import sys
    ks = []
    def mk(name, **kw):
        cfg = Cfg(); cfg.diag = True
        for k, v in kw.items(): setattr(cfg, k, v)
        prog = kernel_l1(name, cfg)
        txt = [I(i.t.replace('L1_', name + '_L1_'), i.kind) for i in prog]
        ks.append((name, txt, 256, 163840, ''))
    mk('a_kernel')
    mk('b_kernel', only=['xk0', 'xk1', 'xk2', 'xk4', 'xk6', 'xk8', 'xk11', 'xk23', 'xk25', 'xk28', 'kend'])
    mk('c_kernel', weave_z=False, weave_kv=False)
    mk('d_kernel', stf='sc1')
    open('t1.s', 'w').write(assemble_file(ks))
```

```python
from common import *
from att import *
from l1 import Cfg
import sp as SPM

MAXJ = 4
S_JT = 44
S_JW = 76

def enc_att(h, qb, c0, n, nu, role, pid): return [1, h | qb << 8 | role << 16, c0 | n << 8 | nu << 16, pid]
def enc_sp(tt, ft): return [2, tt | ft << 8, 0, 0]

def table_v1(with_sp=False, xoff=0):
    jobs = [[] for _ in range(256)]
    for b in range(256):
        x = (b + xoff) & 7; c = b >> 3
        h = 2 * x + (c & 1); k = c >> 1
        i = k & 7
        pid = h * 8 + i
        L = 15 - i; nL = 2 * L + 2
        na = nL - 18
        if k < 8:
            jobs[b].append(enc_att(h, L, na, 18, 16, 2 if na > 0 else 0, pid))
        else:
            if na > 0: jobs[b].append(enc_att(h, L, 0, na, na, 1, pid))
            jobs[b].append(enc_att(h, i, 0, 2 * i + 2, 2 * i, 0, 0))
    return jobs

def table_sched(path='sched.json'):
    import json
    bins = json.load(open(path))
    jobs = [[] for _ in range(256)]
    for b in range(256):
        x = b & 7; c = b >> 3
        for s in bins[c]:
            if s[0] == 'sp': jobs[b].append(enc_sp(x, s[1]))
            else:
                _, hh, qb, c0, n, role = s
                h = 2 * x + hh
                nu = n - 2 if c0 + n == 2 * qb + 2 else n
                jobs[b].append(enc_att(h, qb, c0, n, nu, role, h * 16 + qb))
    return jobs

def table_text(jobs, label):
    o = ['.p2align 6', f'{label}:']
    for j in jobs:
        assert len(j) < MAXJ
        w = []
        for k, e in enumerate(j): w += [e[0] | (256 if k == len(j) - 1 else 0)] + e[1:]
        w += [0] * (4 * MAXJ - len(w))
        o.append('.long ' + ', '.join(str(x) for x in w))
    return '\n'.join(o)

def kernel_l2(name, jobs, cfg, nwg=256, kidx=1, with_sp=True, with_att=True):
    ST = Stamps(cfg.diag, 80, cfg.only or ['job', 'zero', 'qk0', 'loop', 'final', 'stats', 'end', 'pro'])
    o = kernel_head(name, nwg) + ST.rt() + ST.mark('start')
    pf = lambda L: []
    if cfg.pf:
        o += touch_code(16, name, name + '_stop', 255, 100)
        def pf(L, vt):
            return [I(f's_bitcmp1_b32 s{S_JW}, 8'), I(f's_cbranch_scc0 {L}')] + srd(16, P_WO, 4096 * 896) + touch_buf(16, vt, 100, 14) + \
                   srd(16, P_WOUT, 896 * 896) + touch_buf(16, vt + 1, 100, 12, wave_lo=2) + [I(f'{L}:')]
    o += [I(f's_getpc_b64 s[{S_JT}:{S_JT+1}]'),
          I(f's_add_u32 s{S_JT}, s{S_JT}, {name}_jt@rel32@lo+4'), I(f's_addc_u32 s{S_JT+1}, s{S_JT+1}, {name}_jt@rel32@hi+12'),
          I(f's_lshl_b32 s100, s2, 6'),
          I(f's_add_u32 s{S_JT}, s{S_JT}, s100'), I(f's_addc_u32 s{S_JT+1}, s{S_JT+1}, 0'),
          I(f'{name}_next:'), I(f's_load_dwordx4 s[{S_JW}:{S_JW+3}], s[{S_JT}:{S_JT+1}], 0'),
          I(f's_add_u32 s{S_JT}, s{S_JT}, 16'), I(f's_addc_u32 s{S_JT+1}, s{S_JT+1}, 0'), I('s_waitcnt lgkmcnt(0)'),
          I(f's_cmp_eq_u32 s{S_JW}, 0'), I(f's_cbranch_scc1 {name}_fin'),
          I(f's_bitcmp1_b32 s{S_JW}, 1'), I(f's_cbranch_scc1 {name}_sp'),
          I(f's_and_b32 s{AS.H}, s{S_JW+1}, 255'), I(f's_bfe_u32 s{AS.QB}, s{S_JW+1}, 0x80008'), I(f's_lshr_b32 s{AS.ROLE}, s{S_JW+1}, 16'),
          I(f's_and_b32 s{AS.C0}, s{S_JW+2}, 255'), I(f's_bfe_u32 s{AS.N}, s{S_JW+2}, 0x80008'), I(f's_lshr_b32 s{AS.NU}, s{S_JW+2}, 16'),
          I(f's_mov_b32 s{AS.PID}, s{S_JW+3}')]
    if with_att: o += att_job(ST, pf('ATT_pf', 254) if cfg.pf else [])
    o += [I('s_waitcnt lgkmcnt(0)'), I('s_barrier'), I(f's_branch {name}_next')]
    o += [I(f'{name}_sp:')] + (SPM.sp_job(S_JW + 1, ST, pf('SP_pf', 100) if cfg.pf else []) if with_sp else []) + [I('s_barrier'), I(f's_branch {name}_next')]
    o += [I(f'{name}_fin:')] + ST.rt() + ST.dump(kidx)
    o += kernel_tail(name) + kernel_stop(name)
    return fix_hazards(ST.finalize(o, name)), table_text(jobs, f'{name}_jt')
```

```python
from common import *
from l1 import f2h, OOB, Cfg
K = 1024

def kernel_out(name, cfg):
    ST = Stamps(cfg.diag, 70, cfg.only)
    SRD_W, SRD_O = 4, 8
    va = Alloc(2, 32); sa = Alloc(50, 70)
    V_L16 = 0
    A = OpD('a', SRD_WS, 2, 12, 160, 8192, V_L16, sa)
    W = OpT('w', SRD_W, 896, 256, 7, [8 * K * i for i in range(16)], va, sa, cnat=True, ncol=112 if cfg.out_oob else None)
    s_x, s_c, s_part, s_tb, s_jt, s_t, s_cnt, s_st, s_g, s_u, s_i, s_j = [sa.get() for _ in range(12)]
    TMP = va.get(4)
    o = kernel_head(name, 256) + ST.rt() + ST.mark('start')
    o += srd(SRD_W, P_WO, 4096 * 896) + srd(SRD_O, P_OUT, 2048 * 896)
    o += [I(f's_and_b32 s{s_x}, s2, 7'), I(f's_lshr_b32 s{s_c}, s2, 3'), I(f's_lshr_b32 s{s_part}, s{s_x}, 1'),
          I(f's_and_b32 s{s_jt}, s{s_c}, 3'), I(f's_and_b32 s{s_tb}, s{s_x}, 1'), I(f's_lshl_b32 s{s_tb}, s{s_tb}, 3'),
          I(f's_lshr_b32 s{s_t}, s{s_c}, 2'), I(f's_add_u32 s{s_tb}, s{s_tb}, s{s_t}'),
          I(f's_mul_i32 s{A.s_off}, s{s_tb}, 156'), I(f's_mul_i32 s{s_t}, s{s_part}, 39'), I(f's_add_u32 s{A.s_off}, s{A.s_off}, s{s_t}'),
          I(f's_lshl_b32 s{A.s_off}, s{A.s_off}, 13'), I(f's_add_u32 s{A.s_off}, s{A.s_off}, {AF}'),
          I(f's_lshl_b32 s{s_t}, s{S_WAVE}, 11'), I(f's_add_u32 s{A.s_off}, s{A.s_off}, s{s_t}'),
          I(f's_mul_i32 s{W.s_off}, s{s_part}, {39 * 32 * 896}'), I(f's_mul_i32 s{s_j}, s{s_jt}, 224'), I(f's_add_u32 s{W.s_off}, s{W.s_off}, s{s_j}'),
          I(f's_mul_i32 s{s_t}, s{S_WAVE}, {8 * 896}'), I(f's_add_u32 s{s_j}, s{s_j}, s{s_t}'),
          I(f'v_lshlrev_b32 v{V_L16}, 4, v{V_LANE}'), I(f's_mov_b32 s{s_t}, 0')]
    ws_ = W.setup(TMP, s_t)
    o += ws_[:W._ndma]
    mid = expand(ws_[W._ndma:])
    if cfg.pf: o += touch_code(16, name, name + '_stop', 95, 100)
    base_dma = W.dma_all
    def dma_sw(gi):
        d = base_dma(gi)
        if gi == 11:
            d = [Grp([I(f's_cmp_eq_u32 s{s_part}, 3'), I(f's_cselect_b32 s{SRD_W}, s{P_WOUT}, s{SRD_W}'), I(f's_cselect_b32 s{SRD_W+1}, s{P_WOUT+1}, s{SRD_W+1}'),
                      I(f's_cselect_b32 s{SRD_W+2}, {896 * 896}, s{SRD_W+2}'), I(f's_cselect_b32 s{W.s_off}, s{s_j}, s{W.s_off}')])] + d
        return d
    W.dma_all = dma_sw
    ACC = 96
    acc = lambda i, j: ACC + 4 * (j * 7 + i)
    T = 88
    mid += [I(f's_lshl_b32 s{s_g}, s{s_tb}, 2'), I(f's_add_u32 s{s_g}, s{s_g}, s{s_jt}'),
            I(f's_lshl_b32 s{s_u}, s{s_g}, 4'), I(f's_add_u32 s{s_u}, s{s_u}, s{S_WAVE}'), I(f's_lshl_b32 s{s_u}, s{s_u}, 14'),
            I(f's_add_u32 s{s_u}, s{s_u}, {OUTP}'),
            I(f's_lshl_b32 s{s_t}, s{s_part}, 16'), I(f's_add_u32 s{s_st}, s{s_u}, s{s_t}'),
            I(f's_lshl_b32 s{s_g}, s{s_g}, 8'), I(f's_add_u32 s{s_g}, s{s_g}, {FLG + 128}'),
            I(f'v_cmp_eq_u32 vcc, 0, v{V_LANE}'), I(f'v_mov_b32 v{T}, {OOB}'), I(f'v_mov_b32 v{T + 1}, 1'), I(f'v_cndmask_b32 v{T}, v{T}, 0, vcc'),
            I(f'v_and_b32 v{T + 2}, 15, v{V_LANE}'), I(f'v_mul_u32_u24 v{T + 2}, 896, v{T + 2}'), I(f'v_lshrrev_b32 v{T + 3}, 4, v{V_LANE}'),
            I(f'v_lshl_add_u32 v{T + 2}, v{T + 3}, 3, v{T + 2}'), I(f'v_mov_b32 v{T + 3}, 0'),
            I(f's_lshl_b32 s{s_i}, s{s_tb}, 7'), I(f's_lshl_b32 s{s_t}, s{S_WAVE}, 5'), I(f's_add_u32 s{s_i}, s{s_i}, s{s_t}'),
            I(f's_mul_i32 s{s_i}, s{s_i}, 896'), I(f's_mul_i32 s{s_t}, s{s_jt}, 224'), I(f's_add_u32 s{s_i}, s{s_i}, s{s_t}')]
    pro, steps = gemm_steps(W, A, 39, (32, 60), (0, 0), acc, accp='v', sync_pos=0.9, rd_end=11, gs=3, mid=mid + ST.mark('issue'))
    post = [I('s_nop 4')]
    for p in range(3): post += [I(f's_cmp_eq_u32 s{s_part}, {p + 1}'), I(f's_cbranch_scc1 OUT_p{p + 1}')]
    for part in range(4):
        post += [I(f'OUT_p{part}:')]
        for u in range(14):
            if u % 4 != part:
                post += [I(f'buffer_store_dwordx4 {vr(ACC + 4 * u, 4)}, v{V_L16}, {sr(SRD_WS,4)}, s{s_st} offen offset:{(u % 4) * 1024} sc1')]
            if u % 4 == 3: post += [I(f's_add_u32 s{s_st}, s{s_st}, 4096')]
        post += [I('s_waitcnt vmcnt(0)'), I('s_barrier')] + ST.mark('stored') + [
                 I(f's_cmp_eq_u32 s{S_WAVE}, 0'), I(f's_cbranch_scc0 OUT_w{part}'),
                 I(f'buffer_atomic_add v{T + 1}, v{T}, {sr(SRD_WS,4)}, s{s_g} offen'),
                 I(f'OUT_poll{part}:'), I(f'buffer_load_dword v{T + 4}, v{T + 3}, {sr(SRD_WS,4)}, s{s_g} offen sc1'), I('s_waitcnt vmcnt(0)'),
                 I(f'v_readfirstlane_b32 s{s_t}, v{T + 4}'), I(f's_cmp_ge_u32 s{s_t}, 4'), I(f's_cbranch_scc1 OUT_w{part}'), I('s_sleep 1'), I(f's_branch OUT_poll{part}'),
                 I(f'OUT_w{part}:'), I('s_barrier')] + ST.mark('poll')
        us = [u for u in range(14) if u % 4 == part]
        body = []
        R = 160
        for k, u in enumerate(us):
            for q, p in enumerate([p for p in range(4) if p != part]):
                body += [I(f's_add_u32 s{s_st}, s{s_u}, {p * 65536 + u * 1024}'),
                         I(f'buffer_load_dwordx4 {vr(R + 12 * k + 4 * q, 4)}, v{V_L16}, {sr(SRD_WS,4)}, s{s_st} offen sc1', tag=('p', k))]
        for k, u in enumerate(us):
            b = R + 12 * k; a = ACC + 4 * u
            body += [W_vm(('p', k))]
            body += [I(f'v_add_f32 v{b + r}, v{b + r}, v{b + 4 + r}') for r in range(4)]
            body += [I(f'v_add_f32 v{a + r}, v{a + r}, v{b + 8 + r}') for r in range(4)]
            body += [I(f'v_add_f32 v{b + r}, v{b + r}, v{a + r}') for r in range(4)]
            body += [I(f'v_cvt_pk_bf16_f32 v{b}, v{b}, v{b + 1}'), I(f'v_cvt_pk_bf16_f32 v{b + 1}, v{b + 2}, v{b + 3}')]
            body += [I(f's_add_u32 s{s_t}, s{s_i}, {(u // 7) * 16 * 896 + (u % 7) * 32}'),
                     I(f'buffer_store_dwordx2 {vr(b, 2)}, v{T + 2}, {sr(SRD_O,4)}, s{s_t} offen', tag='o')]
        post += resolve_waits(body) + [I('s_branch OUT_fin')]
    post += [I('OUT_fin:')]
    for t in range(39): steps[t] = ST.mark(f'xo{t}') + steps[t]
    main = finish_multi([('lin', expand(o) + pro + ST.mark('pro')), ('steps', steps, 99, 'OUT_loop', s_cnt)])
    p = main + ST.mark('loop') + post + ST.mark('end') + ST.rt() + ST.dump(2) + kernel_tail(name) + kernel_stop(name)
    return fix_hazards(ST.finalize(p, name))
```

```python
from common import *
from l1 import f2h
K = 1024
SRD_WSP, SRD_BSP = 4, 8

def sp_job(s_w, ST, pf=()):
    va = Alloc(2, 32); sa = Alloc(50, 76)
    Zf = OpF('z', SRD_WS, 8, 4, [96 * K + 8 * K * i for i in range(8)], va, sa, gran=1, adv=56 * 1024)
    W = OpR('w', SRD_WSP, 4096, 256, 8, [0, 32 * K, 64 * K], va, sa, dyn=True)
    s_tt, s_ft, s_wm, s_wn, s_t, s_cnt, s_st, s_z, s_t2 = [sa.get() for _ in range(9)]
    TMP = va.get(3); V_L8 = va.get(); VB = va.get()
    o = srd(SRD_WSP, P_WSP, 2048 * 4096) + srd(SRD_BSP, P_BSP, 4096)
    o += [I(f's_and_b32 s{s_tt}, s{s_w}, 255'), I(f's_lshr_b32 s{s_ft}, s{s_w}, 8'),
          I(f's_lshr_b32 s{s_wm}, s{S_WAVE}, 1'), I(f's_and_b32 s{s_wn}, s{S_WAVE}, 1'),
          I(f's_lshl_b32 s{W.s_off}, s{s_tt}, 20'), I(f's_lshl_b32 s{Zf.s_off}, s{s_ft}, 13'), I(f's_add_u32 s{Zf.s_off}, s{Zf.s_off}, {Z2NF}'),
          I(f's_lshl_b32 s{s_t2}, s{s_wn}, 7')]
    acc = lambda i, j: 4 * (i * 8 + j)
    GT = va.get(8)
    BA = 128
    Z = 128
    ld = []
    ld += [I(f's_lshl_b32 s{s_z}, s{s_tt}, 4'), I(f's_lshl_b32 s{s_t}, s{s_wn}, 3'), I(f's_add_u32 s{s_z}, s{s_z}, s{s_t}'),
           I(f's_lshl_b32 s{s_st}, s{s_z}, 5'),
           I(f'v_and_b32 v{VB}, 15, v{V_LANE}'), I(f'v_lshlrev_b32 v{TMP}, 1, v{VB}'), I(f'v_lshlrev_b32 v{VB}, 2, v{VB}'),
           I(f'v_lshlrev_b32 v{V_L8}, 3, v{V_LANE}')]
    ld += [I(f'buffer_load_ushort a{BA + j}, v{TMP}, {sr(SRD_BSP,4)}, s{s_st} offen offset:{32 * j}', tag='b') for j in range(8)]
    ld += [I(f's_lshl_b32 s{s_st}, s{s_st}, 1'), I(f's_add_u32 s{s_st}, s{s_st}, {GATE}')]
    ld += [I(f'buffer_load_dword v{GT + j}, v{VB}, {sr(SRD_WS,4)}, s{s_st} offen offset:{64 * j}', tag='b') for j in range(8)]
    ld += [I(f's_mul_i32 s{s_st}, s{s_z}, 56'), I(f's_lshl_b32 s{s_t}, s{s_ft}, 3'), I(f's_add_u32 s{s_st}, s{s_st}, s{s_t}'),
           I(f's_lshl_b32 s{s_t}, s{s_wm}, 2'), I(f's_add_u32 s{s_st}, s{s_st}, s{s_t}'), I(f's_lshl_b32 s{s_st}, s{s_st}, 9'),
           I(f's_add_u32 s{s_st}, s{s_st}, {Z1F}')]
    for j in range(8):
        ld += [I(f'buffer_load_dwordx2 {vr(Z + 2 * (j * 4 + i), 2)}, v{V_L8}, {sr(SRD_WS,4)}, s{s_st} offen offset:{512 * i}', tag='z') for i in range(4)]
        ld += [I(f's_add_u32 s{s_st}, s{s_st}, {56 * 512}')]
    un = [W_vm(['b', 'z'])]
    un += [I(f'v_sub_f32 v{GT + j}, 1.0, v{GT + j}') for j in range(8)]
    for j in range(7, -1, -1):
        for k in range(7, -1, -1):
            src = Z + 8 * j + k; d = Z + 16 * j + 2 * k
            un += [I(f'v_and_b32 v{d + 1}, 0xffff0000, v{src}'), I(f'v_lshlrev_b32 v{d}, 16, v{src}')]
        un += [I(f'v_mul_f32 v{Z + 16 * j + k}, v{Z + 16 * j + k}, v{GT + j}') for k in range(16)]
    un += [I(f's_lshl_b32 s{s_st}, s{s_tt}, 1'), I(f's_add_u32 s{s_st}, s{s_st}, s{s_wn}'), I(f's_mul_i32 s{s_st}, s{s_st}, 156'),
           I(f's_lshl_b32 s{s_t}, s{s_ft}, 2'), I(f's_add_u32 s{s_st}, s{s_st}, s{s_t}'), I(f's_lshl_b32 s{s_t}, s{s_wm}, 1'),
           I(f's_add_u32 s{s_st}, s{s_st}, s{s_t}'), I(f's_lshl_b32 s{s_st}, s{s_st}, 13'), I(f's_add_u32 s{s_st}, s{s_st}, {AF + 128 * 8192}'),
           I(f's_add_u32 s{s_z}, s{s_st}, 8192'), I(f'v_lshlrev_b32 v{TMP}, 4, v{V_LANE}')]
    bg = BG()
    bg.add(chop(ld, 48, 53, 32)); bg.add(chop(un, 56, 64, 32))
    ws_ = W.setup(TMP, s_t2); zs_ = Zf.setup(TMP, s_t)
    o += ws_[:W._ndma] + [I(f's_lshl_b32 s{s_t}, s{s_wm}, 2')] + zs_
    pro, steps = gemm_steps(Zf, W, 64, (32, 80), (48, 96), acc, bg=bg, gs=2, mid=expand(ws_[W._ndma:]))
    post = list(pf)
    post += [I(f'v_accvgpr_read_b32 v{GT + j}, a{BA + j}') for j in range(8)]
    BB = 32
    post += [I(f'v_lshlrev_b32 v{BB + 2 * j}, 16, v{GT + j}') for j in range(8)]
    X = 48
    k = 0
    for j in range(8):
        for p in range(2):
            x = X + 8 * (k % 4); k += 1
            accs = [acc(2 * p, j) + r for r in range(4)] + [acc(2 * p + 1, j) + r for r in range(4)]
            post += [I(f'v_accvgpr_read_b32 v{x + r}, a{accs[r]}') for r in range(8)]
            post += [I(f'v_pk_add_f32 {vr(x + 2 * r, 2)}, {vr(x + 2 * r, 2)}, {vr(BB + 2 * j, 2)} op_sel_hi:[1,0]') for r in range(4)]
            post += [I(f'v_pk_mul_f32 {vr(x + 2 * r, 2)}, {vr(x + 2 * r, 2)}, {vr(Z + 16 * j + 8 * p + 2 * r, 2)}') for r in range(4)]
            post += [I(f'v_cvt_pk_bf16_f32 v{x + kk}, v{x + 2 * kk}, v{x + 2 * kk + 1}') for kk in range(4)]
            post += [I(f'buffer_store_dwordx4 {vr(x, 4)}, v{TMP}, {sr(SRD_WS,4)}, s{s_z if p else s_st} offen offset:{(j % 4) * 1024}', tag='st')]
        if j == 3: post += [I(f's_add_u32 s{s_st}, s{s_st}, 4096'), I(f's_add_u32 s{s_z}, s{s_z}, 4096')]
    parts = [('lin', ST.mark('job') + expand(o) + pro + ST.mark('pro')), ('steps', steps, 8, 'SP_loop', s_cnt), ('lin', ST.mark('loop') + post + ST.mark('end'))]
    return finish_multi(parts)
```

```python
import sys
from common import *
from l1 import kernel_l1, Cfg
from l2 import *
from outk import kernel_out
def build(path, diag=False, only=None, xoff=0, stf=''):
    cfg = Cfg(); cfg.diag = diag; cfg.only = only; cfg.stf = stf
    ks = [('l1_kernel', kernel_l1('l1_kernel', cfg), 256, 163840, '')]
    p, t = kernel_l2('l2_kernel', table_sched(), cfg)
    ks.append(('l2_kernel', p, 256, 163840, t))
    ks.append(('out_kernel', kernel_out('out_kernel', cfg), 256, 131072, ''))
    import json
    if diag: json.dump(STAMP_NAMES, open(path.replace('.s', '.json'), 'w'))
    open(path, 'w').write(assemble_file(ks))
    open('t/' + path.split('/')[-1] + '.full', 'w').write(assemble_file(ks, compact=False))
if __name__ == '__main__':
    build('t2.s', diag=True)
    build('t3.s', diag=True, only=['start', 'xo0', 'xo4', 'xo8', 'xo12', 'xo16', 'xo20', 'xo24', 'xo28', 'xo32', 'xo36', 'loop', 'xq0', 'xq2', 'xq4', 'xq6', 'xq8', 'xq10', 'xq12', 'qend'])
    build('gated_mix__compressed_kv_cla__mixer_gmlp__prompt.s', diag=False)
```

```python
from common import *
from l1 import f2h, dpp_add, OOB
K = 1024
THR = 8.0
BIG = 1e30

V_L16 = 0; V_RD0 = 2; V_RD1 = 3
V_L = 4
V_T = 6
V_D = 12
V_NINF = 13
GA = 14
NM = 16
PP = 24
NR = 8
RING = 40
S = lambda b, i, t: 72 + 32 * b + 4 * (i * 2 + t)
Q = lambda t, s: 136 + 4 * (t * 8 + s)
X = 200
O = lambda d, t: 4 * (d * 2 + t)
P = lambda u, t: PP + 4 * (u * 2 + t)
LA = 6

class AS:
    H, QB, C0, N, NU, ROLE, PID = 50, 51, 52, 53, 54, 55, 56
    J = 57; KOFF, VOFF, KEND, VEND = 58, 59, 60, 61
    T0, T1 = 62, 63; WL = 64; TA, TB = 65, 66; REL = 67; ST = 68; T2 = 69
    MK = 70

def dma_sel(off, end, st):
    return [Grp([I(f's_cmp_lt_u32 s{off}, s{end}'), I(f's_cselect_b32 s{st}, s{off}, {OOB}')]), I(f's_add_u32 s{off}, s{off}, 32768')]

def dma_body(slot, st, tag='dma'):
    o = []
    for q in range(8):
        if q % 4 == 0:
            o.append(I(f's_add_u32 m0, s{AS.WL}, {slot * 32768 + q * 1024}')); m0t = o[-1].t
            if q == 4: o.append(I(f's_add_u32 s{st}, s{st}, 4096'))
        i = I(f'buffer_load_dwordx4 v{V_L16}, {sr(SRD_WS,4)}, s{st} offen offset:{(q % 4) * 1024} lds', tag=tag)
        i.m0 = m0t
        o.append(i)
    return o

def dma_elem(slot, off, end, tag='dma'):
    return dma_sel(off, end, AS.T0) + dma_body(slot, AS.T0, tag)

def kmap(f):
    return 2 * (f // 16) + (f % 2), (f % 16) // 2
def rd(slot, f, tag, isk=None):
    base = V_RD0 if slot < 2 else V_RD1
    if isk is None: isk = slot % 2 == 1
    m = f
    if isk: i, s_ = kmap(f); m = i * 8 + s_
    return I(f'ds_read_b128 {vr(RING + 4 * (f % NR), 4)}, v{base} offset:{(slot % 2) * 32768 + m * 1024}', tag=tag)

def at(items, pos):
    for k, x in enumerate(items): x.pos = pos + 1e-4 * k; x.pin = True
    return items

BARG = 57
NPRE = 6
DMAG = [2, 10, 18, 26, 34, 42, 50, 62]
def place_dma(d, sel):
    o = at([d[0]], 1)
    for q in range(4): o += at([d[1 + q]], DMAG[q])
    o += at([d[5]], 29) + at([d[6]], 30)
    for q in range(4): o += at([d[7 + q]], DMAG[4 + q])
    o += at([sel[0]], 53) + at([sel[1]], 54)
    return o

def frag_side(slot, next_slot, vm, isk=None):
    side = []
    nxt = NPRE
    for k in range(16):
        for j in range(2):
            if nxt < 32: side += at([rd(slot, nxt, ('f', nxt), isk)], 4 * k + 0.01 * j); nxt += 1
        if 2 * k + 2 < 32 and not (next_slot is not None and 4 * k + 3 >= BARG): side += at([W_lg([('f', 2 * k + 2), ('f', 2 * k + 3)])], 4 * k + 3)
    if next_slot is not None:
        side += at([I('s_waitcnt lgkmcnt(0)'), vm, I('s_barrier')], BARG)
        side += at([rd(next_slot, 0, ('n', 0)), rd(next_slot, 1, ('n', 1))], BARG + 1)
        side += at([rd(next_slot, 2, ('n', 2)), rd(next_slot, 3, ('n', 3))], BARG + 2)
        side += at([rd(next_slot, 4, ('n', 4)), rd(next_slot, 5, ('n', 5))], BARG + 4)
        side += at([W_lg(('n', 1))], 63)
    return side

def free_gaps(side, n=64):
    used = {}
    for x in side:
        if x.pin: used.setdefault(int(x.pos), []).append(x)
    return [g for g in range(n) if sum(y.cost for y in used.get(g, [])) == 0 and sum(len(y.items) if y.kind == 'group' else 1 for y in used.get(g, [])) <= 1]

def qk_mfmas(b, zero=False):
    mf = []
    for f in range(32):
        i, s = kmap(f)
        for t in ((0, 1) if f % 2 == 0 else (1, 0)):
            d = vr(S(b, i, t), 4)
            c = d if s else ('0' if zero else vr(NM + 4 * t, 4))
            mf.append(I(f'v_mfma_f32_16x16x32_bf16 {d}, {vr(RING + 4 * (f % NR), 4)}, {vr(Q(t, s), 4)}, {c}'))
    return mf

def pv_mfmas():
    return [I(f'v_mfma_f32_16x16x32_bf16 {ar(O(f % 16, t), 4)}, {vr(RING + 4 * (f % NR), 4)}, {vr(P(f // 16, t), 4)}, {ar(O(f % 16, t), 4)}')
            for f in range(32) for t in ((0, 1) if f % 2 == 0 else (1, 0))]

def exp_cvt(b):
    ex = []; cv = []
    for u in range(2):
        for t in range(2):
            regs_ = [S(b, 2 * u, t) + r for r in range(4)] + [S(b, 2 * u + 1, t) + r for r in range(4)]
            ex.append([I(f'v_exp_f32 v{x}, v{x}') for x in regs_])
            cv.append([I(f'v_cvt_pk_bf16_f32 v{P(u, t) + k}, v{regs_[2*k]}, v{regs_[2*k+1]}') for k in range(4)])
    return ex, cv

def lsum(b):
    return [I(f'v_add_f32 v{V_L + t}, v{V_L + t}, v{S(b, i, t) + r}') for i in range(4) for r in range(4) for t in range(2)]

def maxchk(b):
    vals = [S(b, i, t) + r for i in range(4) for t in range(2) for r in range(4)]
    a, c = V_T, V_T + 1
    o = [I(f'v_max3_f32 v{a}, v{vals[0]}, v{vals[1]}, v{vals[2]}'), I(f'v_max3_f32 v{c}, v{vals[3]}, v{vals[4]}, v{vals[5]}')]
    k = 6; w = 0
    while k + 1 < 32:
        d = (a, c)[w % 2]; w += 1
        o.append(I(f'v_max3_f32 v{d}, v{d}, v{vals[k]}, v{vals[k+1]}')); k += 2
    o.append(I(f'v_max_f32 v{a}, v{a}, v{c}'))
    o.append(I(f'v_cmp_lt_f32 vcc, {f2h(THR)}, v{a}'))
    return o

def mask_ops(b):
    o = [I(f'v_subrev_u32 v{V_T + 2}, s{AS.REL}, v{V_D}'), I(f'v_add_u32 v{V_T + 2}, 48, v{V_T + 2}'), I(f's_sub_u32 s{AS.REL}, s{AS.REL}, 64')]
    items = [(i, t, r) for i in range(4) for t in range(2) for r in range(4)]
    for a in range(0, 32, 3):
        grp = items[a:a + 3]
        for k, (i, t, r) in enumerate(grp):
            c = -(16 * (i - t) + r) + 48
            assert -16 <= c <= 64
            o.append(I(f'v_cmp_lt_i32 {sr(AS.MK + 2 * k, 2)}, {c}, v{V_T + 2}'))
        for k, (i, t, r) in enumerate(grp):
            x = S(b, i, t) + r
            o.append(I(f'v_cndmask_b32 v{x}, v{x}, v{V_NINF}, {sr(AS.MK + 2 * k, 2)}'))
    return o

def xlane(op, d, t):
    o = []
    for sw in ('v_permlane16_swap_b32', 'v_permlane32_swap_b32'):
        o += [I(f'v_mov_b32 v{b}, v{a}') for a, b in zip(d, t)]
        o += [I(f'{sw} v{a}, v{b}') for a, b in zip(d, t)]
        o += [I(f'{op} v{a}, v{a}, v{b}') for a, b in zip(d, t)]
    return o

def rowmax_update(b, first):
    D = [X, X + 1]; T = [X + 2, X + 3]
    o = []
    for k in range(8):
        for t in range(2):
            v = [S(b, i, t) + r for i in range(4) for r in range(4)]
            if k == 0: o += [I(f'v_max3_f32 v{D[t]}, v{v[0]}, v{v[1]}, v{v[2]}')]
            elif k < 7: o += [I(f'v_max3_f32 v{D[t]}, v{D[t]}, v{v[2*k+1]}, v{v[2*k+2]}')]
            else: o += [I(f'v_max_f32 v{D[t]}, v{D[t]}, v{v[15]}')]
    o += xlane('v_max_f32', D, T)
    o += [I(f'v_max_f32 v{D[t]}, {f2h(-BIG) if first else 0}, v{D[t]}') for t in range(2)]
    for t in range(2):
        if first: o += [I(f'v_sub_f32 v{NM + 4 * t + r}, 0, v{D[t]}') for r in range(4)]
        else: o += [I(f'v_sub_f32 v{NM + 4 * t + r}, v{NM + 4 * t + r}, v{D[t]}') for r in range(4)]
    sub = [I(f'v_sub_f32 v{S(b, i, t) + r}, v{S(b, i, t) + r}, v{D[t]}') for i in range(4) for t in range(2) for r in range(4)]
    o += sub
    if not first:
        o += [I(f'v_exp_f32 v{T[t]}, -v{D[t]}') for t in range(2)]
        o += [I(f'v_mul_f32 v{V_L + t}, v{V_L + t}, v{T[t]}') for t in range(2)]
        for d in range(16):
            for t in range(2):
                x = X + 4 + 4 * t
                o += [I(f'v_accvgpr_read_b32 v{x + r}, a{O(d, t) + r}') for r in range(4)]
                o += [I(f'v_mul_f32 v{x + r}, v{x + r}, v{T[t]}') for r in range(4)]
                o += [I(f'v_accvgpr_write_b32 a{O(d, t) + r}, v{x + r}') for r in range(4)]
    return o

PRE_LG = [('f', k) for k in range(2, NPRE)]
EXP = set()
def block(mf, side):
    if 'nodma' in EXP: side = [x for x in side if not (x.kind == 'vmem')]
    if 'nobar' in EXP: side = [x for x in side if x.kind != 'bar']
    if 'nods' in EXP: side = [x for x in side if x.kind not in ('ds', 'pwait')]
    if 'novm' in EXP: side = [x for x in side if 'vmcnt' not in x.t]
    w = weave(mf, side)
    check_m0(w)
    return resolve_waits(w, lg_out=PRE_LG)

NEXA = 3
def phaseA(b):
    rs = 1 + 2 * b
    side = frag_side(rs, (rs + 1) % 4, I('s_waitcnt vmcnt(15)'))
    side += place_dma(dma_body((rs + 3) % 4, AS.TA), dma_sel(AS.KOFF, AS.KEND, AS.TB))
    side += at([I(f's_cmp_ge_u32 s{AS.J}, s{AS.NU}')], 60)
    ex, cv = exp_cvt(b)
    fl = []
    for k in range(NEXA): fl += ex[k] + cv[k]
    side += spread(fl, 0, 40)
    return block(qk_mfmas(1 - b), side)

def phaseB(b, masked):
    rs = (2 + 2 * b) % 4
    side = frag_side(rs, (rs + 1) % 4, I('s_waitcnt vmcnt(15)'))
    side += place_dma(dma_body((rs + 3) % 4, AS.TB), dma_sel(AS.VOFF, AS.VEND, AS.TA))
    side += at([I(f's_add_u32 s{AS.J}, s{AS.J}, 1')], 56) + at([I(f's_cmp_ge_u32 s{AS.J}, s{AS.N}')], 60)
    ex, cv = exp_cvt(b)
    fl0 = []
    for k in range(NEXA, 4): fl0 += ex[k] + cv[k]
    ls = lsum(b)
    if masked:
        fl = spread(fl0, 0, 5) + spread(mask_ops(1 - b), 6, 30) + spread(maxchk(1 - b), 31, 45) + spread(ls, 6, 50)
    else:
        fl = spread(fl0, 0, 5) + spread(ls, 6, 50) + spread(maxchk(1 - b), 6.1, 48)
    w = block(pv_mfmas(), side + fl)
    idx = [k for k, i in enumerate(w) if i.kind == 'mfma']
    last_cv = max([k for k, i in enumerate(w) if i.t.startswith('v_cvt')] + [0])
    assert last_cv < idx[30]
    return w

def pk(op, d, a, b, c=None):
    if c is None: return I(f'v_pk_{op}_f32 {vr(d,2)}, {vr(a,2)}, {vr(b,2)} op_sel_hi:[1,0]')
    return I(f'v_pk_{op}_f32 {vr(d,2)}, {vr(a,2)}, {vr(b,2)}, {vr(c,2)} op_sel_hi:[1,0,1]')

PS = X + 12
V_ROW8 = V_D
def preload(L):
    o = [I(f'v_and_b32 v{V_ROW8}, 15, v{V_LANE}'), I(f's_lshl_b32 s{AS.T0}, s{S_WAVE}, 5'), I(f'v_add_u32 v{V_ROW8}, s{AS.T0}, v{V_ROW8}'),
         I(f'v_lshlrev_b32 v{V_T}, 2, v{V_ROW8}'), I(f'v_lshlrev_b32 v{V_ROW8}, 3, v{V_ROW8}'),
         I(f's_lshl_b32 s{AS.T0}, s{AS.QB}, 9'), I(f's_add_u32 s{AS.T0}, s{AS.T0}, {GATE}'),
         I(f's_lshl_b32 s{AS.T1}, s{AS.PID}, 10'), I(f's_add_u32 s{AS.T1}, s{AS.T1}, {PSTAT}')]
    o += [I(f'buffer_load_dword v{GA + t}, v{V_T}, {sr(SRD_WS,4)}, s{AS.T0} offen offset:{64 * t}') for t in range(2)]
    o += [I(f's_lshl_b32 s{AS.T2}, s{AS.PID}, 16'), I(f's_lshl_b32 s{AS.ST}, s{S_WAVE}, 11'), I(f's_add_u32 s{AS.T2}, s{AS.T2}, s{AS.ST}'),
          I(f's_add_u32 s{AS.T2}, s{AS.T2}, {PART}')]
    o += [I(f's_cmp_eq_u32 s{AS.ROLE}, 2'), I(f's_cbranch_scc0 {L}_nomerge'),
          I(f's_lshl_b32 s{AS.ST}, s{AS.PID}, 8'), I(f's_add_u32 s{AS.ST}, s{AS.ST}, {FLG}'), I(f'v_mov_b32 v{PS}, 0'),
          I(f'{L}_poll:'), I(f'buffer_load_dword v{PS + 1}, v{PS}, {sr(SRD_WS,4)}, s{AS.ST} offen sc1'), I('s_waitcnt vmcnt(0)'),
          I(f'v_readfirstlane_b32 s{AS.J}, v{PS + 1}'), I(f's_cmp_eq_u32 s{AS.J}, 0'), I(f's_cbranch_scc1 {L}_poll')]
    o += [I(f'buffer_load_dwordx2 {vr(PS + 2 * t, 2)}, v{V_ROW8}, {sr(SRD_WS,4)}, s{AS.T1} offen offset:{128 * t} sc1') for t in range(2)]
    o += [I(f's_mov_b32 s{AS.ST}, s{AS.T2}')]
    for s_ in range(8):
        o += [I(f'buffer_load_dwordx4 {vr(Q(t, s_), 4)}, v{V_L16}, {sr(SRD_WS,4)}, s{AS.ST} offen offset:{1024 * t} sc1') for t in range(2)]
        o += [I(f's_add_u32 s{AS.ST}, s{AS.ST}, 8192')]
    o += [I(f'{L}_nomerge:'),
          I(f's_mul_i32 s{AS.ST}, s{AS.QB}, 156'), I(f's_lshl_b32 s{AS.T0}, s{AS.H}, 3'), I(f's_add_u32 s{AS.ST}, s{AS.ST}, s{AS.T0}'),
          I(f's_lshl_b32 s{AS.ST}, s{AS.ST}, 13'), I(f's_lshl_b32 s{AS.T0}, s{S_WAVE}, 11'), I(f's_add_u32 s{AS.ST}, s{AS.ST}, s{AS.T0}'),
          I(f's_add_u32 s{AS.ST}, s{AS.ST}, {AF}')]
    return o

def final(b):
    rs = (2 + 2 * b) % 4
    ex, cv = exp_cvt(b)
    o = [I('s_waitcnt vmcnt(0)'), I('s_barrier')] + [rd(rs, f, ('f', f)) for f in range(NPRE)]
    o += ex[0] + ex[1] + cv[0] + cv[1]
    o += preload(f'ATT_f{b}') + [W_lg(('f', 1))]
    side = frag_side(rs, None, None)
    ls = lsum(b) + xlane('v_add_f32', [V_L + t for t in range(2)], [X + t for t in range(2)])
    side += spread(ex[2] + cv[2] + ex[3] + cv[3], 0, 5) + spread(ls, 6, 50)
    w = weave(pv_mfmas(), side)
    idx = [k for k, i in enumerate(w) if i.kind == 'mfma']
    assert max(k for k, i in enumerate(w) if i.t.startswith('v_cvt')) < idx[30]
    return resolve_waits(o + w)


def epilogue(L, ST, pf):
    o = []
    SC = X + 16; WA = X + 20; TT = X + 24; SP_ = X + 28
    sc = lambda t: SC + 2 * t
    wa = lambda t: WA + 2 * t
    o += [I('s_waitcnt vmcnt(0)')] + pf
    o += [I(f'v_mov_b32 v{sc(t)}, 1.0') for t in range(2)]
    o += [I(f's_cmp_eq_u32 s{AS.ROLE}, 2'), I(f's_cbranch_scc0 {L}_nomerge2')]
    for t in range(2): o += [I(f'v_min_f32 v{TT + t}, v{NM + 4 * t}, v{PS + 2 * t}')]
    for t in range(2): o += [I(f'v_sub_f32 v{sc(t)}, v{TT + t}, v{NM + 4 * t}'), I(f'v_sub_f32 v{wa(t)}, v{TT + t}, v{PS + 2 * t}')]
    for t in range(2): o += [I(f'v_exp_f32 v{sc(t)}, v{sc(t)}'), I(f'v_exp_f32 v{wa(t)}, v{wa(t)}')]
    for t in range(2): o += [I(f'v_mul_f32 v{wa(t)}, v{wa(t)}, v{PS + 2 * t + 1}')]
    for t in range(2): o += [I(f'v_fma_f32 v{V_L + t}, v{V_L + t}, v{sc(t)}, v{wa(t)}')]
    o += [I(f'{L}_nomerge2:')]
    for t in range(2): o += [I(f'v_rcp_f32 v{TT + t}, v{V_L + t}')]
    o += [I(f's_cmp_eq_u32 s{AS.ROLE}, 1'), I(f's_cbranch_scc0 {L}_notw')]
    o += [I(f'v_mov_b32 v{GA + t}, 1.0') for t in range(2)]
    for t in range(2): o += [I(f'v_mov_b32 v{SP_ + 2 * t}, v{NM + 4 * t}'), I(f'v_mov_b32 v{SP_ + 2 * t + 1}, v{V_L + t}')]
    o += [I(f'v_mov_b32 v{TT + 2}, {OOB}'), I(f'v_cmp_gt_u32 vcc, 16, v{V_LANE}'), I(f'v_cndmask_b32 v{V_ROW8}, v{TT + 2}, v{V_ROW8}, vcc')]
    o += [I(f'buffer_store_dwordx2 {vr(SP_ + 2 * t, 2)}, v{V_ROW8}, {sr(SRD_WS,4)}, s{AS.T1} offen offset:{128 * t} sc1') for t in range(2)]
    o += [I(f's_mov_b32 s{AS.ST}, s{AS.T2}'), I(f'{L}_notw:')]
    for t in range(2): o += [I(f'v_mul_f32 v{TT + t}, v{TT + t}, v{GA + t}')]
    for t in range(2): o += [I(f'v_mul_f32 v{sc(t)}, v{sc(t)}, v{TT + t}'), I(f'v_mul_f32 v{wa(t)}, v{wa(t)}, v{TT + t}')]
    o += ST.mark('stats')
    o += [I(f's_cmp_eq_u32 s{AS.ROLE}, 1'), I(f's_cbranch_scc1 {L}_recv_w')]
    B0 = 72
    for variant in ('m', 'n', 'w'):
        if variant == 'm': o += [I(f's_cmp_eq_u32 s{AS.ROLE}, 2'), I(f's_cbranch_scc0 {L}_recv_n')]
        else: o += [I(f'{L}_recv_{variant}:')]
        k = 0
        for s_ in range(8):
            for t in range(2):
                x = B0 + 16 * (k % 4); k += 1
                accs = [O(2 * s_, t) + r for r in range(4)] + [O(2 * s_ + 1, t) + r for r in range(4)]
                o += [I(f'v_accvgpr_read_b32 v{x + r}, a{accs[r]}') for r in range(8)]
                if variant == 'm':
                    c = Q(t, s_)
                    for kk in range(4):
                        o += [I(f'v_lshlrev_b32 v{x + 8 + 2 * kk}, 16, v{c + kk}'), I(f'v_and_b32 v{x + 8 + 2 * kk + 1}, 0xffff0000, v{c + kk}')]
                o += [pk('mul', x + 2 * r, x + 2 * r, sc(t)) for r in range(4)]
                if variant == 'm': o += [pk('fma', x + 2 * r, x + 8 + 2 * r, wa(t), x + 2 * r) for r in range(4)]
                o += [I(f'v_cvt_pk_bf16_f32 v{x + kk}, v{x + 2 * kk}, v{x + 2 * kk + 1}') for kk in range(4)]
                o += [I(f'buffer_store_dwordx4 {vr(x, 4)}, v{V_L16}, {sr(SRD_WS,4)}, s{AS.ST} offen offset:{t * 1024}' + (' sc1' if variant == 'w' else ''))]
            o += [I(f's_add_u32 s{AS.ST}, s{AS.ST}, 8192')]
        if variant != 'w': o += [I(f's_branch {L}_done')]
    o += [I('s_waitcnt vmcnt(0)'), I('s_barrier'),
          I(f'v_lshl_add_u32 v{TT}, s{S_WAVE}, 6, v{V_LANE}'), I(f'v_cmp_eq_u32 vcc, 0, v{TT}'),
          I(f's_lshl_b32 s{AS.ST}, s{AS.PID}, 8'), I(f's_add_u32 s{AS.ST}, s{AS.ST}, {FLG}'),
          I(f'v_mov_b32 v{TT}, {OOB}'), I(f'v_cndmask_b32 v{TT}, v{TT}, 0, vcc'), I(f'v_mov_b32 v{TT + 1}, 1'),
          I(f'buffer_store_dword v{TT + 1}, v{TT}, {sr(SRD_WS,4)}, s{AS.ST} offen sc1'),
          I(f'{L}_done:')]
    return o

def att_job(ST=None, pf=()):
    o = [I('ATT_job:')] + ST.mark('job')
    o += [I(f's_lshl_b32 s{AS.WL}, s{S_WAVE}, 13'),
          I(f's_lshl_b32 s{AS.T0}, s{AS.H}, 5'), I(f's_add_u32 s{AS.T0}, s{AS.T0}, s{AS.C0}'), I(f's_lshl_b32 s{AS.T0}, s{AS.T0}, 15'),
          I(f's_add_u32 s{AS.KOFF}, s{AS.T0}, s{AS.WL}'),
          I(f's_lshl_b32 s{AS.T1}, s{AS.N}, 15'), I(f's_add_u32 s{AS.KEND}, s{AS.T0}, s{AS.T1}'),
          I(f's_add_u32 s{AS.VOFF}, s{AS.KOFF}, {VF - KF}'), I(f's_add_u32 s{AS.VEND}, s{AS.KEND}, {VF - KF}'),
          I(f'v_lshlrev_b32 v{V_L16}, 4, v{V_LANE}')]
    assert KF == 0
    dm = dma_elem(0, AS.KOFF, AS.KEND, 'k0')
    dm += [I(f's_lshl_b32 s{AS.T1}, s{AS.H}, 4'), I(f's_add_u32 s{AS.T1}, s{AS.T1}, s{AS.QB}'), I(f's_lshl_b32 s{AS.T1}, s{AS.T1}, 16'),
           I(f's_lshl_b32 s{AS.T2}, s{S_WAVE}, 14'), I(f's_add_u32 s{AS.T1}, s{AS.T1}, s{AS.T2}'), I(f's_add_u32 s{AS.T1}, s{AS.T1}, {QF}'),
           I(f's_add_u32 s{AS.T2}, s{AS.T1}, 8192')]
    for s_ in range(8):
        for t in range(2):
            dm += [I(f'buffer_load_dwordx4 {vr(Q(t, s_), 4)}, v{V_L16}, {sr(SRD_WS,4)}, s{AS.T2 if t else AS.T1} offen offset:{(s_ % 4) * 1024}', tag=('q', s_))]
        if s_ == 3: dm += [I(f's_add_u32 s{AS.T1}, s{AS.T1}, 4096'), I(f's_add_u32 s{AS.T2}, s{AS.T2}, 4096')]
    dm += dma_elem(1, AS.KOFF, AS.KEND, 'k1')
    dm = expand(dm)
    misc = [I(f'v_mov_b32 v{V_RD0}, v{V_L16}'), I(f'v_add_u32 v{V_RD1}, 0x10000, v{V_L16}'),
            I(f'v_mov_b32 v{V_NINF}, 0xff800000'),
            I(f'v_lshrrev_b32 v{V_D}, 4, v{V_LANE}'), I(f'v_lshlrev_b32 v{V_D}, 2, v{V_D}'), I(f'v_and_b32 v{V_T}, 15, v{V_LANE}'),
            I(f'v_sub_u32 v{V_D}, v{V_D}, v{V_T}'),
            I(f's_lshl_b32 s{AS.REL}, s{AS.QB}, 1'), I(f's_sub_u32 s{AS.REL}, s{AS.REL}, s{AS.C0}'),
            I(f's_sub_u32 s{AS.REL}, s{AS.REL}, s{AS.NU}'), I(f's_lshl_b32 s{AS.REL}, s{AS.REL}, 6'), I(f's_lshl_b32 s{AS.ST}, s{S_WAVE}, 5'),
            I(f's_add_u32 s{AS.REL}, s{AS.REL}, s{AS.ST}'), I(f's_mov_b32 s{AS.J}, 1')]
    misc += [I(f'v_mov_b32 v{V_L + t}, 0') for t in range(2)]
    misc += [I(f'v_accvgpr_write_b32 a{r}, 0') for r in range(128)]
    pro = []
    mi = 0
    for i in dm:
        pro.append(i)
        if i.kind == 'vmem':
            pro += misc[mi:mi + 5]; mi += 5
    pro += misc[mi:]
    pro += ST.mark('zero') + [W_vm('k0'), I('s_barrier')] + ST.mark('pro') + ([I('s_waitcnt lgkmcnt(0)')] if ST.en else [])
    pro += [rd(0, f, ('f', f), True) for f in range(NPRE)] + [W_vm(('q', 0)), W_lg(('f', 1))]
    side = frag_side(0, 1, W_vm('k1'), True)
    for s_ in range(1, 8): side += at([W_vm(('q', s_))], 4 * s_ - 2)
    side += spread(dma_elem(2, AS.VOFF, AS.VEND, 'v0') + dma_elem(3, AS.KOFF, AS.KEND, 'k2') + dma_sel(AS.VOFF, AS.VEND, AS.TA), 0, 50)
    w = weave(qk_mfmas(0, zero=True), side)
    check_m0(pro + w)
    o += resolve_waits(pro + w)
    o += [I(f's_cmp_eq_u32 s{AS.NU}, 0'), I('s_cbranch_scc0 ATT_nomask0'), I('s_nop 7')] + mask_ops(0) + [I('ATT_nomask0:')]
    o += rowmax_update(0, True) + ST.mark('qk0') + ([I('s_waitcnt lgkmcnt(0)')] if ST.en else [])
    cmpN = I(f's_cmp_ge_u32 s{AS.J}, s{AS.N}')
    o += [cmpN, I('s_cbranch_scc1 ATT_F0')]
    o += [I('ATT_A0:')] + phaseA(0) + [I('s_cbranch_scc1 ATT_B0m')] + phaseB(0, False) + [I('s_cbranch_vccnz ATT_S1'), I('ATT_D1:'), I('s_cbranch_scc1 ATT_F1')]
    o += phaseA(1) + [I('s_cbranch_scc1 ATT_B1m')] + phaseB(1, False) + [I('s_cbranch_vccnz ATT_S0'), I('ATT_D0:'), I('s_cbranch_scc0 ATT_A0')]
    o += [I('ATT_F0:')] + ST.mark('loop') + final(0) + [I('s_branch ATT_E')]
    o += [I('ATT_B0m:')] + phaseB(0, True) + [I('s_cbranch_vccnz ATT_S1'), I('s_branch ATT_D1')]
    o += [I('ATT_B1m:')] + phaseB(1, True) + [I('s_cbranch_vccnz ATT_S0'), I('s_branch ATT_D0')]
    for b in range(2):
        o += [I(f'ATT_S{b}:'), I('s_nop 7')] + rowmax_update(b, False) + [I('s_nop 1'), I(cmpN.t), I(f's_branch ATT_D{b}')]
    o += [I('ATT_F1:')] + ST.mark('loop') + final(1)
    o += [I('ATT_E:')] + ST.mark('final') + epilogue('ATT_e', ST, list(pf)) + ST.mark('end')
    return o
```

```python
from core import *
from gemm import *

KF    = 0x0000000
VF    = 0x1000000
QF    = 0x2000000
AF    = 0x3000000
Z1F   = 0x4400000
Z2NF  = 0x4800000
STATS = 0x4C00000
GATE  = 0x4C40000
PART  = 0x5000000
PSTAT = 0x4D00000
OUTP  = 0x6000000
FLG   = 0x4C80000
WS_BYTES = 0x10000000

P_X, P_CKV, P_WQ, P_WUK, P_WUV, P_WO, P_BX, P_WIN, P_WSP, P_BSP, P_WOUT, P_GW, P_OUT, P_DBG, P_WS = [20 + 2 * i for i in range(15)]
SRD_A, SRD_B, SRD_WS, SRD_X = 4, 8, 12, 16

def kernel_head(name, nwg):
    return [I(f'{name}:'),
            I(f's_cmp_ge_u32 s2, {nwg}'), I(f's_cbranch_scc1 {name}_end'),
            I('s_load_dwordx16 s[20:35], s[0:1], 0'), I('s_load_dwordx8 s[36:43], s[0:1], 64'),
            I('s_load_dwordx4 s[44:47], s[0:1], 96'), I('s_load_dwordx2 s[48:49], s[0:1], 112'),
            I(f'v_lshrrev_b32 v2, 6, v0'), I(f'v_and_b32 v{V_LANE}, 63, v0'),
            I(f'v_readfirstlane_b32 s{S_WAVE}, v2'),
            I('s_waitcnt lgkmcnt(0)')] + srd(SRD_WS, P_WS, WS_BYTES)

def kernel_tail(name):
    return [I(f'{name}_end:'), I('s_endpgm')]

def kernel_stop(name):
    return [I(f'{name}_stop:'), I('s_endpgm')]

def srd(d, p, nbytes):
    return [I(f's_mov_b32 s{d}, s{p}'), I(f's_mov_b32 s{d+1}, s{p+1}'),
            I(f's_mov_b32 s{d+2}, {nbytes}'), I(f's_mov_b32 s{d+3}, 0x20000')]

def descriptor(name, vgpr=512, accum=256):
    return f'''.p2align 6
.amdhsa_kernel {name}
  .amdhsa_next_free_vgpr {vgpr}
  .amdhsa_next_free_sgpr 102
  .amdhsa_accum_offset {accum}
  .amdhsa_group_segment_fixed_size 0
  .amdhsa_kernarg_size 120
  .amdhsa_user_sgpr_count 2
  .amdhsa_user_sgpr_kernarg_segment_ptr 1
  .amdhsa_system_sgpr_workgroup_id_x 1
.end_amdhsa_kernel'''

def assemble_file(kernels, header='', compact=True):
    o = []
    if header: o.append(header)
    for (name, prog, grid, lds, extra) in kernels:
        o.append(f'; @launch kernel={name} grid=({grid},1,1) block=(256,1,1) lds={lds}')
    o.append('.amdgcn_target "amdgcn-amd-amdhsa--gfx950"')
    if compact: o.append(MACROS)
    o.append('.text')
    for (name, prog, grid, lds, extra) in kernels:
        o.append(f'.globl {name}'); o.append('.p2align 8'); o.append(f'.type {name},@function')
        o.append(text(prog, compact))
    o.append('.section .rodata,"a"')
    for (name, prog, grid, lds, extra) in kernels:
        o.append(descriptor(name))
    for (name, prog, grid, lds, extra) in kernels:
        if extra: o.append(extra)
    return '\n'.join(o) + '\n'

def pack_store(src, srcp, tmp, voff, soff, imm, scale=None, flags='', tag='st'):
    o = []
    s = list(src)
    if srcp == 'a':
        for k in range(8): o.append(I(f'v_accvgpr_read_b32 v{tmp + 4 + k}, a{src[k]}'))
        s = [tmp + 4 + k for k in range(8)]
    if scale is not None:
        for k in range(8):
            o.append(I(f'v_mul_f32 v{tmp + 4 + k}, {scale}, v{s[k]}'))
        s = [tmp + 4 + k for k in range(8)]
    for k in range(4): o.append(I(f'v_cvt_pk_bf16_f32 v{tmp + k}, v{s[2*k]}, v{s[2*k+1]}'))
    o.append(I(f'buffer_store_dwordx4 {vr(tmp, 4)}, v{voff}, {sr(SRD_WS, 4)}, s{soff} offen offset:{imm} {flags}'.rstrip(), tag=tag))
    return o

STAMP = 0x7000000
STAMP_NAMES = {}
class Stamps:
    real = False
    def __init__(self, enable, base_sgpr=80, only=None):
        self.en = enable; self.n = 0; self.b = base_sgpr; self.only = only; self.k = 0
    def mark(self, name):
        if not self.en: return []
        if self.only is None and name.startswith('x'): return []
        if self.only is not None and name not in self.only: return []
        return [I(f's_mem{"real" if Stamps.real else ""}time @{name}', 'smem')]
    def rt(self):
        if not self.en: return []
        self.k += 1
        return [I(f's_memrealtime @rt{self.k}', 'smem')]
    def dump(self, kidx=0):
        if not self.en: return []
        self.kidx = kidx
        return [I('; DUMP', 'dir')]
    def finalize(self, prog, kname=''):
        if not self.en: return prog
        names = []
        for i in prog:
            if ' @' in i.t:
                nm = i.t.split('@')[1]
                if nm not in names: names.append(nm)
        assert self.b + 2 * len(names) <= 100, 'too many stamps'
        STAMP_NAMES[kname] = (self.kidx, names)
        out = []
        for i in prog:
            if ' @' in i.t:
                op, nm = i.t.split('@'); r = self.b + 2 * names.index(nm)
                out.append(I(f'{op}s[{r}:{r+1}]', 'smem'))
            elif i.t == '; DUMP':
                out += [I('s_waitcnt lgkmcnt(0)'), I(f's_lshl_b32 s100, s2, 2'), I(f's_add_u32 s100, s100, s{S_WAVE}'), I('s_lshl_b32 s100, s100, 6'),
                        I(f's_add_u32 s100, s100, {STAMP + self.kidx * 0x10000}'), I('v_mov_b32 v2, 0')]
                for k in range(len(names)):
                    out += [I(f'v_mov_b32 v3, s{self.b + 2 * k}'), I(f'buffer_store_dword v3, v2, {sr(SRD_WS,4)}, s100 offen offset:{4 * k}'), I('s_nop 1')]
                out += [I('s_waitcnt vmcnt(0)')]
            else: out.append(i)
        return out

def touch_buf(srd_, vt, s_tmp, per_wg_log2, tag='pf', wave_lo=0, s_idx=2):
    nw = (1 << per_wg_log2) // 8192
    o = [I(f's_lshl_b32 s{s_tmp}, s{s_idx}, {per_wg_log2}'), I(f's_sub_u32 s101, s{S_WAVE}, {wave_lo}'), I(f's_lshl_b32 s101, s101, 13'),
         I(f's_add_u32 s{s_tmp}, s{s_tmp}, s101'), I(f's_cmp_lt_u32 s101, {max(nw, 1) * 8192}'), I(f's_cselect_b32 s{s_tmp}, s{s_tmp}, 0x80000000'),
         I(f'v_lshlrev_b32 v{vt}, 7, v{V_LANE}'),
         I(f'buffer_load_dword v{vt}, v{vt}, {sr(srd_,4)}, s{s_tmp} offen', tag=tag)]
    return o

def code_srd(d, lab0, lab1, uniq):
    return [I(f's_getpc_b64 s[{d}:{d+1}]'), I(f's_add_u32 s{d}, s{d}, {lab0}@rel32@lo+4'), I(f's_addc_u32 s{d+1}, s{d+1}, {lab0}@rel32@hi+12'),
            I(f's_mov_b32 s{d+2}, {lab1}-{lab0}'), I(f's_mov_b32 s{d+3}, 0x20000')]

def touch_code(d, lab0, lab1, vt, s_tmp, per_xcd=True):
    o = code_srd(d, lab0, lab1, None)
    o += [I(f's_lshr_b32 s{s_tmp}, s2, 3') if per_xcd else I(f's_mov_b32 s{s_tmp}, s2'),
          I(f's_lshl_b32 s{s_tmp}, s{s_tmp}, 2'), I(f's_add_u32 s{s_tmp}, s{s_tmp}, s{S_WAVE}'), I(f's_lshl_b32 s{s_tmp}, s{s_tmp}, 13'),
          I(f'v_lshlrev_b32 v{vt}, 7, v{V_LANE}'),
          I(f'buffer_load_dword v{vt}, v{vt}, {sr(d,4)}, s{s_tmp} offen', tag='pf')]
    return o
```

```python
from core import *

class Alloc:
    def __init__(self, lo, hi): self.p = lo; self.hi = hi
    def get(self, n=1, align=1):
        self.p = (self.p + align - 1) // align * align
        r = self.p; self.p += n
        assert self.p <= self.hi, 'out of regs'
        return r

V_LANE = 1
S_WAVE = 3

class OpBase:
    gran = 1
    def dma_all(self, gi):
        slot = self.slots[(gi + self.slot0) % len(self.slots)]
        dyn = getattr(self, 'dyn', False)
        out = []
        for q in range(self.nq):
            if q % 4 == 0:
                if dyn:
                    out.append(Grp([I(f's_add_u32 s100, s{self.s_wl}, s{self.s_ws}'), I(f's_add_u32 m0, s100, {self.lo + q * 1024}')])); m0t = out[-1].items[1].t
                else:
                    out.append(I(f's_add_u32 m0, s{self.s_wl}, {slot + q * 1024}')); m0t = out[-1].t
            out.append(I(f'buffer_load_dwordx4 v{self.voff(q)}, {sr(self.srd,4)}, s{self.s_off} offen offset:{(q % 4) * 1024} lds',
                         tag=(self.name, gi)))
            out[-1].m0 = m0t
        out.append(I(f's_add_u32 s{self.s_off}, s{self.s_off}, {self.adv}'))
        if getattr(self, 'wrap', None):
            s_end, span = self.wrap
            out.append(Grp([I(f's_cmp_ge_u32 s{self.s_off}, s{s_end}'), I(f's_cselect_b32 s101, {span}, 0'), I(f's_sub_u32 s{self.s_off}, s{self.s_off}, s101')]))
        if dyn:
            span = len(self.slots) * self.gbytes
            out.append(Grp([I(f's_add_u32 s{self.s_ws}, s{self.s_ws}, {self.gbytes}'), I(f's_cmp_lt_u32 s{self.s_ws}, {span}'),
                            I(f's_cselect_b32 s{self.s_ws}, s{self.s_ws}, 0')]))
        return out

class OpR(OpBase):
    gran = 2
    def __init__(self, name, srd, stride, rows_wg, nfr, slots, va, sa, perm=False, slot0=0, dyn=False):
        self.name, self.srd, self.stride, self.rows, self.nfr, self.slots, self.perm = name, srd, stride, rows_wg, nfr, slots, perm
        self.dyn = dyn
        self.slot0 = slot0
        self.nq = rows_wg // 32
        self.lo = min(slots)
        self.nwin = (max(slots) + rows_wg * 128 - 1 - self.lo) // 65536 + 1
        if dyn:
            self.nwin = 1
            self.s_rs = sa.get(); self.s_ws = sa.get()
            self.v_b = va.get(1)
        self.v_off = va.get(self.nq); self.v_rd = va.get(2 * self.nwin)
        self.s_wl = sa.get(); self.s_off = sa.get()
        self.adv = 128
        self.gbytes = rows_wg * 128
    def voff(self, q): return self.v_off + q
    def setup(self, tmp, wave_row0):
        t0, t1, t2 = tmp, tmp + 1, tmp + 2
        o = []
        rpw = self.rows // 4
        o += [I(f's_mul_i32 s{self.s_wl}, s{S_WAVE}, {rpw * self.stride}'),
              I(f's_add_u32 s{self.s_off}, s{self.s_off}, s{self.s_wl}'),
              I(f's_mul_i32 s{self.s_wl}, s{S_WAVE}, {rpw * 128}')]
        o += [I(f'v_lshrrev_b32 v{t0}, 3, v{V_LANE}'),
              I(f'v_mul_u32_u24 v{t0}, {self.stride}, v{t0}'),
              I(f'v_bfe_u32 v{t2}, v{V_LANE}, 4, {1 if self.perm else 2}'),
              I(f'v_and_b32 v{t1}, 7, v{V_LANE}'), I(f'v_xor_b32 v{t1}, v{t1}, v{t2}'),
              I(f'v_lshl_add_u32 v{t0}, v{t1}, 4, v{t0}')]
        assert self.stride % 128 == 0
        for q in range(self.nq):
            x = ((q & 3) << 1) if self.perm else 4 * (q & 1)
            c = 8 * q * self.stride - 1024 * (q & 3)
            assert c >= 0
            d = self.v_off + q
            if x == 0: o += [I(f'v_add_u32 v{d}, {c}, v{t0}')]
            elif not self.perm and q >= 2: o += [I(f'v_add_u32 v{d}, {c - (8 * self.stride - 1024)}, v{self.v_off + 1}')]
            else: o += [I(f'v_xor_b32 v{d}, {x << 4}, v{t0}'), I(f'v_add_u32 v{d}, {c}, v{d}')]
        if self.dyn: o += [I(f's_mov_b32 s{self.s_ws}, {self.slots[self.slot0] - self.lo}')]
        self._ndma = len(o)
        o += [I(f'v_and_b32 v{t0}, 15, v{V_LANE}'),
              I(f'v_lshrrev_b32 v{t1}, 1, v{t0}'),
              I(f'v_lshrrev_b32 v{t2}, 4, v{V_LANE}'),
              I(f'v_xor_b32 v{t1}, v{t1}, v{t2}')]
        if self.perm:
            o += [I(f'v_lshrrev_b32 v{t2}, 2, v{t0}'), I(f'v_lshlrev_b32 v{t2}, 3, v{t2}'),
                  I(f'v_and_b32 v{t0}, 3, v{t0}'), I(f'v_add_u32 v{t0}, v{t0}, v{t2}')]
        o += [I(f'v_add_u32 v{t0}, s{wave_row0}, v{t0}'),
              I(f'v_lshlrev_b32 v{t0}, 7, v{t0}'),
              I(f'v_lshl_add_u32 v{self.v_rd}, v{t1}, 4, v{t0}')]
        if self.lo:
            o += [I(f'v_add_u32 v{self.v_rd}, {self.lo}, v{self.v_rd}')]
        if self.dyn:
            o += [I(f'v_mov_b32 v{self.v_b}, v{self.v_rd}'), I(f's_mov_b32 s{self.s_rs}, {self.slots[self.slot0] - self.lo}')]
            if self.slots[self.slot0] != self.lo: o += [I(f'v_add_u32 v{self.v_rd}, s{self.s_rs}, v{self.v_b}')]
        o += [I(f'v_xor_b32 v{self.v_rd + 1}, 64, v{self.v_rd}')]
        for w in range(1, self.nwin):
            o += [I(f'v_add_u32 v{self.v_rd + 2 * w}, {65536 * w}, v{self.v_rd}'),
                  I(f'v_add_u32 v{self.v_rd + 2 * w + 1}, {65536 * w}, v{self.v_rd + 1}')]
        return o
    def reads(self, t, dst):
        gi = t // 2; ks = t % 2
        if self.dyn:
            o = []
            for i in range(self.nfr):
                o.append(I(f'ds_read_b128 {vr(dst + 4 * i, 4)}, v{self.v_rd + ks} offset:{16 * i * 128}', tag=('rd', t)))
            if ks == 1:
                span = len(self.slots) * self.gbytes
                o += [Grp([I(f's_add_u32 s{self.s_rs}, s{self.s_rs}, {self.gbytes}'), I(f's_cmp_lt_u32 s{self.s_rs}, {span}'),
                           I(f's_cselect_b32 s{self.s_rs}, s{self.s_rs}, 0')]),
                      I(f'v_add_u32 v{self.v_rd}, s{self.s_rs}, v{self.v_b}'), I(f'v_xor_b32 v{self.v_rd + 1}, 64, v{self.v_rd}')]
            return o
        slot = self.slots[(gi + self.slot0) % len(self.slots)] - self.lo
        win = slot // 65536; slot -= win * 65536
        o = []
        for i in range(self.nfr):
            ro = ((i // 2) * 32 + (i % 2) * 4) if self.perm else 16 * i
            off = slot + ro * 128
            assert off < 65536
            o.append(I(f'ds_read_b128 {vr(dst + 4 * i, 4)}, v{self.v_rd + 2 * win + ks} offset:{off}', tag=('rd', t)))
        return o

class OpT(OpBase):
    gran = 1
    def __init__(self, name, srd, stride, RB, nfr, slots, va, sa, cnat=False, slot0=0, ncol=None):
        self.name, self.srd, self.stride, self.RB, self.nfr, self.slots, self.cnat = name, srd, stride, RB, nfr, slots, cnat
        self.slot0 = slot0
        self.nq = 32 * RB // 1024 // 4
        self.nwin = (max(slots) + 32 * RB - 1 - min(slots)) // 65536 + 1
        self.v_off = va.get(self.nq); self.v_rd = va.get(nfr * self.nwin)
        self.s_wl = sa.get(); self.s_off = sa.get()
        self.ncol = ncol
        self.adv = 32 * stride
        self.gbytes = 32 * RB
    def voff(self, q): return self.v_off + q
    def setup(self, tmp, wave_p0):
        t0, t1, t2 = tmp, tmp + 1, tmp + 2
        RB = self.RB; CR = RB // 16; RI = 1024 // RB
        lgCR = CR.bit_length() - 1
        o = [I(f's_mul_i32 s{self.s_wl}, s{S_WAVE}, {8 * self.stride}'),
             I(f's_add_u32 s{self.s_off}, s{self.s_off}, s{self.s_wl}'),
             I(f's_mul_i32 s{self.s_wl}, s{S_WAVE}, {8 * RB}')]
        o += [I(f'v_lshrrev_b32 v{t0}, {lgCR}, v{V_LANE}'),
              I(f'v_and_b32 v{t1}, {CR - 1}, v{V_LANE}'),
              I(f'v_lshlrev_b32 v{t2}, 1, v{t0}') if RB > 128 else I(f'v_and_b32 v{t2}, 6, v{t0}'),
              I(f'v_xor_b32 v{t1}, v{t1}, v{t2}')]
        assert RB > 128 or self.cnat
        if not self.cnat:
            o += [I(f's_and_b32 s101, s{S_WAVE}, 1'), I(f's_lshl_b32 s101, s101, 3'), I(f'v_xor_b32 v{t1}, s101, v{t1}')]
        o += [I(f'v_lshlrev_b32 v{t1}, 4, v{t1}'), I(f'v_mul_u32_u24 v{t0}, {self.stride}, v{t0}')]
        for q in range(self.nq):
            d = self.v_off + q
            fq = (RI * q) & (7 if self.cnat else 3)
            c = RI * q * self.stride - 1024 * (q & 3)
            assert c >= 0
            if fq: o += [I(f'v_xor_b32 v{d}, {fq << 5}, v{t1}'), I(f'v_add_u32 v{d}, v{d}, v{t0}')]
            else: o += [I(f'v_add_u32 v{d}, v{t1}, v{t0}')]
            if c: o += [I(f'v_add_u32 v{d}, {c}, v{d}')]
            if self.ncol:
                o += [I(f'v_xor_b32 v{t2}, {fq << 5}, v{t1}'), I(f'v_cmp_gt_u32 vcc, {self.ncol * 2}, v{t2}'), I(f'v_mov_b32 v{t2}, 0x80000000'),
                      I(f'v_cndmask_b32 v{d}, v{t2}, v{d}, vcc')]
        self._ndma = len(o)
        o += [I(f'v_lshrrev_b32 v{t0}, 4, v{V_LANE}'),
              I(f'v_bfe_u32 v{t1}, v{V_LANE}, 2, 2'),
              I(f'v_lshl_add_u32 v{t2}, v{t0}, {2 if self.cnat else 3}, v{t1}'),
              I(f'v_and_b32 v{t0}, 1, v{t0}'),
              I(f'v_lshl_add_u32 v{t0}, v{t0}, 2, v{t1}'),
              I(f'v_lshrrev_b32 v{t0}, {0 if RB > 128 else 1}, v{t0}'),
              I(f'v_lshlrev_b32 v{t0}, 5, v{t0}'),
              I(f'v_mul_u32_u24 v{t2}, {RB}, v{t2}'),
              I(f'v_and_b32 v{t1}, 3, v{V_LANE}'),
              I(f'v_lshl_add_u32 v{t2}, v{t1}, 3, v{t2}'),
              I(f'v_add_u32 v{t2}, {min(self.slots)}, v{t2}'),
              I(f's_lshl_b32 s101, s{wave_p0}, 5')]
        for j in range(self.nfr):
            d = self.v_rd + j
            o += [Grp([I(f'v_xad_u32 v{d}, s101, v{t0}, v{t2}'), I(f's_add_u32 s101, s101, 32')])]
            for w in range(1, self.nwin):
                o += [I(f'v_add_u32 v{d + w * self.nfr}, {65536 * w}, v{d}')]
        return o
    def reads(self, t, dst):
        slot = self.slots[(t + self.slot0) % len(self.slots)] - min(self.slots)
        win = slot // 65536; slot -= win * 65536
        o = []
        sec = (16 if self.cnat else 4) * self.RB
        for j in range(self.nfr):
            assert slot + sec < 65536
            o.append(I(f'ds_read_b64_tr_b16 {vr(dst + 4 * j, 2)}, v{self.v_rd + win * self.nfr + j} offset:{slot}', tag=('rd', t)))
            o.append(I(f'ds_read_b64_tr_b16 {vr(dst + 4 * j + 2, 2)}, v{self.v_rd + win * self.nfr + j} offset:{slot + sec}', tag=('rd', t)))
        return o

class OpF(OpBase):
    def __init__(self, name, srd, nwg, nfr, slots, va, sa, gran=1, adv=None, slot0=0):
        self.name, self.srd, self.nwg, self.nfr, self.slots, self.gran = name, srd, nwg, nfr, slots, gran
        self.slot0 = slot0
        self.nq = nwg * gran // 4
        self.step_adv = adv if adv is not None else nwg * 1024
        self.adv = self.step_adv * gran
        self.v_off = va.get(1 if (gran == 1 or self.step_adv == nwg * 1024) else self.nq); self.v_rd = va.get(1)
        self.s_wl = sa.get(); self.s_off = sa.get()
        self.gbytes = nwg * gran * 1024
        assert gran == 1 or self.step_adv == nwg * 1024
        assert self.nq <= 4, 'more than 4 per wave needs soffset bump'
    def voff(self, q): return self.v_off
    def setup(self, tmp, wave_f0):
        o = [I(f's_mul_i32 s{self.s_wl}, s{S_WAVE}, {self.nq * 1024}'),
             I(f's_add_u32 s{self.s_off}, s{self.s_off}, s{self.s_wl}'),
             I(f'v_lshlrev_b32 v{self.v_off}, 4, v{V_LANE}'),
             I(f's_lshl_b32 s101, s{wave_f0}, 10'),
             I(f's_add_u32 s101, s101, {min(self.slots)}'),
             I(f'v_add_u32 v{self.v_rd}, s101, v{self.v_off}')]
        return o
    def reads(self, t, dst):
        gi = t // self.gran; ks = t % self.gran
        slot = self.slots[(gi + self.slot0) % len(self.slots)] - min(self.slots)
        o = []
        for i in range(self.nfr):
            off = slot + (ks * self.nwg + i) * 1024
            assert off < 65536
            o.append(I(f'ds_read_b128 {vr(dst + 4 * i, 4)}, v{self.v_rd} offset:{off}', tag=('rd', t)))
        return o

class OpD:
    direct = True
    gran = 1
    def __init__(self, name, srd, nfr, D, base, adv, v_l16, sa, flags=''):
        self.name, self.srd, self.nfr, self.D, self.base, self.adv, self.v = name, srd, nfr, D, base, adv, v_l16
        self.s_off = sa.get(); self.flags = flags
        self.slots = list(range(D))
    def frag(self, t, i): return self.base + 4 * ((t % self.D) * self.nfr + i)
    def dma_all(self, gi):
        o = [I(f'buffer_load_dwordx4 {vr(self.frag(gi, i), 4)}, v{self.v}, {sr(self.srd,4)}, s{self.s_off} offen offset:{i * 1024} {self.flags}'.rstrip(), tag=(self.name, gi))
             for i in range(self.nfr)]
        return o + [I(f's_add_u32 s{self.s_off}, s{self.s_off}, {self.adv}')]
    def reads(self, t, dst): return []

ZIG = True
def zig2(m, n):
    if not ZIG: return [(i, j) for i in range(m) for j in range(n)]
    if m % 2: return [(i, j) for (j, i) in zig2(n, m)]
    seq = []
    for a in range(m // 2):
        js = range(n) if a % 2 == 0 else range(n - 1, -1, -1)
        for k, j in enumerate(js):
            seq += [(2 * a, j), (2 * a + 1, j)] if k % 2 == 0 else [(2 * a + 1, j), (2 * a, j)]
    return seq

def initial_dmas(ops, n, skip=(), upto=None):
    pro = []
    mx = max(len(op.slots) * op.gran for op in ops)
    if upto is not None: mx = min(mx, upto)
    for t in range(mx):
        for op in sorted(ops, key=lambda o: -o.gran):
            if t % op.gran == 0:
                gi = t // op.gran
                if gi < len(op.slots) and gi * op.gran < n and (op.name, gi) not in skip:
                    pro += op.dma_all(gi)
    return pro

def gemm_steps(opM, opN, n, fM, fN, acc, accp='a', bg=None, sync_pos=0.80, first_zero=True, issued=None, tail_bar=False, rd_end=None,
               dma_end=0.95, gs=1, mid=None, bar0=None, first=None, late_rate=4):
    ops = (opM, opN)
    isd = lambda op: getattr(op, 'direct', False)
    lds = [op for op in ops if not isd(op)]
    ngr = {op.name: (n + op.gran - 1) // op.gran for op in ops}
    pro = expand(initial_dmas(ops, n, issued or (), upto=first)) + (mid or [])
    late = []
    if first is not None:
        mx = max(len(op.slots) * op.gran for op in ops)
        for t in range(first, mx):
            for op in sorted(ops, key=lambda o: -o.gran):
                if t % op.gran == 0 and t // op.gran < len(op.slots) and t < n and (op.name, t // op.gran) not in (issued or ()):
                    late.append(op.dma_all(t // op.gran))
    need = lambda a, b: [(op.name, t // op.gran) for op in lds for t in range(a, min(b, n - 1) + 1)]
    dneed = lambda t: [(op.name, t) for op in ops if isd(op)]
    if bar0 is None: bar0 = gs - 1
    pro += [W_vm(need(0, bar0 + 1)), I('s_barrier')]
    pro += expand(opM.reads(0, fM[0]) + opN.reads(0, fN[0]))
    pro += [I('s_waitcnt lgkmcnt(0)'), W_vm(dneed(0)), I('s_barrier')]
    nxt = {op.name: min(len(op.slots), ngr[op.name]) for op in ops}
    queue = []
    def release(upto):
        for op in sorted(lds, key=lambda o: -o.gran):
            while nxt[op.name] < ngr[op.name] and (nxt[op.name] - len(op.slots) + 1) * op.gran - 1 <= upto:
                d = op.dma_all(nxt[op.name]); nxt[op.name] += 1
                if op.nq == 8: queue.append([op.name, d[:5]]); queue.append([op.name + '+', d[5:]])
                else: queue.append([op.name, d])
    release(0)
    steps = []
    nm = opM.nfr * opN.nfr
    fr = lambda op, f, t, i: op.frag(t, i) if isd(op) else f[t % 2] + 4 * i
    for t in range(n):
        mf = []
        for (i, j) in zig2(opM.nfr, opN.nfr):
            if True:
                d = vr(acc(i, j), 4, accp)
                c = '0' if (t == 0 and first_zero) else d
                mf.append(I(f'v_mfma_f32_16x16x32_bf16 {d}, {vr(fr(opM, fM, t, i), 4)}, {vr(fr(opN, fN, t, j), 4)}, {c}'))
        side = []
        dm = []
        left = gs - ((t - bar0 - 1) % gs)
        if gs == 1:
            deep = lambda nme: any(op.name == nme[:-1] and len(op.slots) >= 3 for op in lds)
            take = [c for k, c in enumerate(queue) if not (c[0].endswith('+') and deep(c[0]) and any(x[0] == c[0][:-1] for x in queue[:k]))]
        else:
            take = queue[:min((len(queue) + left - 1) // left, 3)]
        if late:
            take = []
            for _ in range(late_rate):
                if late: dm += late.pop(0)
        for c in take: dm += c[1]; queue.remove(c)
        for op in ops:
            while isd(op) and not late and nxt[op.name] < n and nxt[op.name] - op.D <= t - 1 and len(dm) < 12:
                dm += op.dma_all(nxt[op.name]); nxt[op.name] += 1
        rd = []
        if t + 1 < n:
            rd = opM.reads(t + 1, fM[(t + 1) % 2]) + opN.reads(t + 1, fN[(t + 1) % 2])
        sp = sync_pos * nm
        side += spread(rd, 0, rd_end if rd_end is not None else sp - min(6, 0.2 * nm))
        side += spread(dm, 0, dma_end * nm)
        if t + 1 < n:
            s = [I('s_waitcnt lgkmcnt(0)')]
            isbar = (t % gs == bar0)
            if isbar and t + 2 < n: s += [W_vm(need(t + 2, t + 1 + gs)), I('s_barrier')]; release(t + 1)
            elif tail_bar and t + 2 >= n: s += [I('s_barrier')]
            for x in s: x.pos = sp
            side += s
            w = W_vm(dneed(t + 1)); w.pos = nm - 0.4; w.pin = True
            if dneed(t + 1): side.append(w)
        if bg: side += bg(t)
        steps.append(weave(mf, side))
    assert not queue
    return pro, steps

def chop(stream, t0, t1, nm, lo=0.0, hi=1.0):
    tot = sum(max(i.cost, 1) for i in stream)
    nst = t1 - t0
    out = {t: [] for t in range(t0, t1)}
    acc = 0
    for i in stream:
        f = acc / tot * nst
        t = min(int(f), nst - 1)
        i.pos = (lo + (hi - lo) * (f - t)) * nm
        out[t0 + t].append(i)
        acc += max(i.cost, 1)
    return out

class BG:
    def __init__(self): self.d = {}
    def add(self, dd):
        for t, l in dd.items(): self.d.setdefault(t, []).extend(l)
    def at(self, t, lst, p0, p1):
        self.d.setdefault(t, []).extend(spread(lst, p0, p1))
    def __call__(self, t): return self.d.get(t, [])

def finish_multi(parts):
    flat = []
    for k, p in enumerate(parts):
        flat.append(I(f'; part {k}', 'dir'))
        if p[0] == 'lin': flat += p[1]
        else:
            for t, s in enumerate(p[1]):
                flat.append(I(f'; step {t}', 'dir')); flat += s
    check_m0(flat)
    flat = resolve_waits(flat)
    out = []; cur = None; k = -1
    groups = []
    for i in flat:
        if i.kind == 'dir' and i.t.startswith('; part'):
            k += 1; groups.append([] if parts[k][0] == 'steps' else [[]]); continue
        if i.kind == 'dir' and i.t.startswith('; step'):
            groups[-1].append([]); continue
        groups[-1][-1].append(i)
    for k, p in enumerate(parts):
        if p[0] == 'lin': out += groups[k][0]
        else: out += roll(groups[k], p[2], p[3], p[4])
    return out

def finish(pro, steps, post, U, label, cnt, vm_out=None):
    flat = list(pro)
    for t, s in enumerate(steps):
        flat.append(I(f'; step {t}', 'dir')); flat += s
    flat.append(I('; endsteps', 'dir'))
    flat += post
    flat = resolve_waits(flat, vm_out)
    p2 = []; st = []; po = []; cur = p2
    for i in flat:
        if i.kind == 'dir' and i.t.startswith('; step'):
            st.append([]); cur = st[-1]; continue
        if i.kind == 'dir' and i.t == '; endsteps':
            cur = po; continue
        cur.append(i)
    return p2 + roll(st, U, label, cnt) + po
```

```python
from common import *
import math, struct

def f2h(x): return '0x%08x' % struct.unpack('<I', struct.pack('<f', x))[0]
LOG2E = 1.4426950408889634
QSCALE = LOG2E / 16.0
K = 1024

class Cfg:
    stf = ''
    weave_z = True
    weave_kv = True
    diag = False
    only = None
    out_oob = True
    pf = True
    pfsp = True
    out_first = 5
    out_rate = 2
    z_first = 4
    z_rate = 3
    stag = 0
    zcol = True
    pf0 = 2
    nextcode = True
    kidx = 0

SRD_XX, SRD_WIN, SRD_CKV, SRD_WKV, SRD_WQ, SRD_DBG = 4, 8, 16, 52, 56, 60
S_XCD, S_C, S_MT, S_HEAD, S_SEL, S_TB = 64, 65, 66, 67, 68, 69
OOB = 0x80000000

def dpp_add(d, s, ctrl): return I(f'v_add_f32_dpp v{d}, v{s}, v{s} {ctrl} row_mask:0xf bank_mask:0xf')

def gelu_stream(regs_, tmps, vc1):
    c0 = -2.0 * LOG2E * math.sqrt(2.0 / math.pi)
    o = []
    G = len(tmps)
    for a in range(0, len(regs_), G):
        grp = list(zip(regs_[a:a + G], tmps))
        o += [I(f'v_mul_f32 v{t}, v{x}, v{x}') for x, t in grp]
        o += [I(f'v_fmaak_f32 v{t}, v{vc1}, v{t}, {f2h(c0)}') for x, t in grp]
        o += [I(f'v_mul_f32 v{t}, v{x}, v{t}') for x, t in grp]
        o += [I(f'v_exp_f32 v{t}, v{t}') for x, t in grp]
        o += [I(f'v_add_f32 v{t}, 1.0, v{t}') for x, t in grp]
        o += [I(f'v_rcp_f32 v{t}, v{t}') for x, t in grp]
        o += [I(f'v_mul_f32 v{x}, v{x}, v{t}') for x, t in grp]
    return o

def gate_code(tmp):
    x0, x1, gw, a0, a1, t0, t1, vo = tmp, tmp + 4, tmp + 8, tmp + 12, tmp + 13, tmp + 14, tmp + 15, tmp + 12
    iss = [I(f's_lshl_b32 s{S_GATE}, s2, 3'), I(f's_lshl_b32 s101, s{S_WAVE}, 1'), I(f's_add_u32 s{S_GATE}, s{S_GATE}, s101'),
            I(f's_mul_i32 s101, s{S_GATE}, 896'),
            I(f'v_lshlrev_b32 v{vo}, 4, v{V_LANE}'),
            I(f'v_mov_b32 v{t0}, {OOB}'), I(f'v_cmp_gt_u32 vcc, 56, v{V_LANE}'), I(f'v_cndmask_b32 v{vo}, v{t0}, v{vo}, vcc'),
            I(f'buffer_load_dwordx4 {vr(gw,4)}, v{vo}, {sr(SRD_GW,4)}, 0 offen', tag='gate'),
            I(f'buffer_load_dwordx4 {vr(x0,4)}, v{vo}, {sr(SRD_XX,4)}, s101 offen', tag='gate'),
            I(f'buffer_load_dwordx4 {vr(x1,4)}, v{vo}, {sr(SRD_XX,4)}, s101 offen offset:896', tag='gate'),
            I(f's_lshl_b32 s{S_GATE}, s{S_GATE}, 2'), I(f's_add_u32 s{S_GATE}, s{S_GATE}, {GATE}')]
    iss += [I(f'v_lshl_add_u32 v{t0}, s{S_WAVE}, 10, v{vo}'), I(f'v_cmp_gt_u32 vcc, 256, v{t0}'), I(f'v_mov_b32 v{t1}, {OOB}'),
            I(f's_lshl_b32 s101, s2, 8'), I(f'v_cndmask_b32 v{t0}, v{t1}, v{t0}, vcc'), I(f'v_mov_b32 v{t1}, 0'), I(f's_add_u32 s101, s101, {FLG}'),
            I(f'buffer_store_dword v{t1}, v{t0}, {sr(SRD_WS,4)}, s101 offen', tag='flg')]
    fin = [W_vm('gate'), I(f'v_mov_b32 v{a0}, 0'), I(f'v_mov_b32 v{a1}, 0')]
    for k in range(4):
        for (hi, op) in ((0, 'v_lshlrev_b32 v{d}, 16, v{s}'), (1, 'v_and_b32 v{d}, 0xffff0000, v{s}')):
            fin += [I(op.format(d=t0, s=gw + k)), I(op.format(d=t1, s=x0 + k)), I(f'v_fmac_f32 v{a0}, v{t0}, v{t1}'),
                    I(op.format(d=t1, s=x1 + k)), I(f'v_fmac_f32 v{a1}, v{t0}, v{t1}')]
    for c in ('row_ror:8', 'row_ror:4', 'row_ror:2', 'row_ror:1'):
        fin += [dpp_add(a0, a0, c), dpp_add(a1, a1, c)]
    for sw in ('v_permlane16_swap_b32', 'v_permlane32_swap_b32'):
        fin += [I(f'v_mov_b32 v{t0}, v{a0}'), I(f'v_mov_b32 v{t1}, v{a1}'),
                I(f'{sw} v{a0}, v{t0}'), I(f'{sw} v{a1}, v{t1}'),
                I(f'v_add_f32 v{a0}, v{a0}, v{t0}'), I(f'v_add_f32 v{a1}, v{a1}, v{t1}')]
    for a in (a0, a1):
        fin += [I(f'v_mul_f32 v{a}, {f2h(-LOG2E)}, v{a}'), I(f'v_exp_f32 v{a}, v{a}'), I(f'v_add_f32 v{a}, 1.0, v{a}'), I(f'v_rcp_f32 v{a}, v{a}')]
    fin += [I(f'v_mov_b32 v{t0}, {OOB}'), I(f'v_cmp_eq_u32 vcc, 0, v{V_LANE}'), I(f'v_cndmask_b32 v{t0}, v{t0}, 0, vcc'),
            I(f'buffer_store_dwordx2 {vr(a0,2)}, v{t0}, {sr(SRD_WS,4)}, s{S_GATE} offen', tag='gst')]
    return iss, fin
SRD_GW = 40
SRD_PF = 44
SRD_C = 96
S_GATE = 70
s_ae, s_be = 50, 51

def variant(isV, cfg, ST):
    nm = 'V' if isV else 'K'
    sa = Alloc(71, 74)
    s_wm, s_wn, s_t = sa.get(), sa.get(), sa.get()
    sa2 = Alloc(20, 40)
    vq = Alloc(2, 20); vkv = Alloc(20, 43); vz = Alloc(43, 63)
    V_L16 = 0
    ZX = OpR('zx', SRD_XX, 896, 128, 2, [96 * K + 16 * K * i for i in range(4)], vz, sa2, perm=isV)
    ZW = OpT('zw', SRD_WIN, 3584, 256, 7, [32 * K + 8 * K * i for i in range(8)], vz, sa2, ncol=112 if cfg.zcol else None)
    A = OpR('A', SRD_CKV, 2048, 256, 8, [0, 32 * K, 64 * K], vkv, sa2, dyn=True)
    B = OpT('B', SRD_WKV, 8192, 512, 8, [96 * K + 16 * K * i for i in range(4)], vkv, sa2, slot0=3)
    QX = OpR('qx', SRD_XX, 896, 256, 8, [32 * K, 64 * K, 0], vq, sa2)
    QW = OpT('qw', SRD_WQ, 8192, 256, 4, [96 * K + 8 * K * i for i in range(8)], vq, sa2, slot0=6)
    s_cnt, s_st, s_st2, s_zst, s_sst, s_poll = [sa2.get() for _ in range(6)]
    TMP = 248
    TS = 240
    o = []
    o += srd(SRD_WKV, P_WUV if isV else P_WUK, 1024 * 8192) + srd(SRD_WQ, P_WQ, 448 * 8192) + srd(SRD_GW, P_GW, 896)
    o += srd(SRD_PF, P_WSP, 2048 * 4096)
    giss, gfin = gate_code(224)
    o += [I(f's_mul_i32 s{ZX.s_off}, s{S_TB}, {128 * 896}'),
          I(f's_mul_i32 s{ZW.s_off}, s{S_XCD}, 224')]
    if isV: o += [I(f's_add_u32 s{ZW.s_off}, s{ZW.s_off}, 1792')]
    if cfg.pf0:
        t0, t1 = 250, 251
        o += [I(f's_lshl_b32 s{s_st}, s2, 2'), I(f's_add_u32 s{s_st}, s{s_st}, s{S_WAVE}'),
              I(f's_mul_i32 s{s_st2}, s{s_st}, {14 * 128}'), I(f'v_lshlrev_b32 v{t0}, 7, v{V_LANE}'), I(f'v_mov_b32 v{t1}, {OOB}'),
              I(f'v_cmp_gt_u32 vcc, 14, v{V_LANE}'), I(f's_mul_i32 s{s_zst}, s{s_st}, {13 * 128}'), I(f'v_cndmask_b32 v{t1}, v{t1}, v{t0}, vcc'),
              I(f'buffer_load_dword v252, v{t1}, {sr(SRD_XX,4)}, s{s_st2} offen', tag='pf'),
              I(f'buffer_load_dword v253, v{t1}, {sr(SRD_WIN,4)}, s{s_zst} offen', tag='pf')]
        if cfg.pf0 > 1:
            o += [I(f's_and_b32 s{s_st2}, s{s_st}, 511'), I(f's_lshl_b32 s{s_st2}, s{s_st2}, 11'),
                  I(f'v_mov_b32 v{t1}, {OOB}'), I(f'v_cmp_gt_u32 vcc, 16, v{V_LANE}'), I(f's_lshl_b32 s{s_zst}, s{s_st}, 12'), I(f'v_cndmask_b32 v{t1}, v{t1}, v{t0}, vcc'),
                  I(f'buffer_load_dword v254, v{t1}, {sr(SRD_WKV,4)}, s{s_st2} offen', tag='pf'),
                  I(f'v_and_b32 v{t1}, 15, v{V_LANE}'), I(f'v_cmp_gt_u32 vcc, 3, v{t1}'), I(f'v_mov_b32 v{t1}, {OOB}'), I(f'v_cndmask_b32 v{t1}, v{t1}, v{t0}, vcc'),
                  I(f'v_cmp_gt_u32 vcc, 32, v{V_LANE}'), I(f'v_mov_b32 v{t0}, {OOB}'), I(f'v_cndmask_b32 v{t1}, v{t0}, v{t1}, vcc'),
                  I(f'buffer_load_dword v249, v{t1}, {sr(SRD_CKV,4)}, s{s_zst} offen', tag='pf')]
    zx_s = ZX.setup(TS, s_t); o += zx_s[:ZX._ndma]
    zw_s = ZW.setup(TS, s_cnt); o += zw_s[:ZW._ndma]
    o += initial_dmas((ZX, ZW), 14, upto=2)
    if cfg.pf: o += touch_code(SRD_C, cfg.name, cfg.name + '_stop', 255, s_st)
    o += initial_dmas((ZX, ZW), 14, skip={('zx', 0), ('zw', 0), ('zw', 1)}, upto=cfg.z_first)
    o += ST.mark('dma0')
    o += [I(f's_lshl_b32 s{s_t}, s{S_WAVE}, 5')]
    o += zx_s[ZX._ndma:] + [I(f's_mov_b32 s{s_cnt}, 0')] + zw_s[ZW._ndma:]
    o += [I(f's_lshr_b32 s{s_wm}, s{S_WAVE}, 1'), I(f's_and_b32 s{s_wn}, s{S_WAVE}, 1')]
    o += [I(f's_lshl_b32 s{A.s_off}, s{S_MT}, 19'), I(f's_lshl_b32 s{B.s_off}, s{S_HEAD}, 9'), I(f'v_lshlrev_b32 v{V_L16}, 4, v{V_LANE}')]
    s_tok, s_w = (s_wm, s_wn) if isV else (s_wn, s_wm)
    o += [I(f's_lshl_b32 s{s_t}, s{s_tok}, 7')] + A.setup(TS, s_t)
    o += [I(f's_lshl_b32 s{s_t}, s{s_w}, 3')] + B.setup(TS, s_t)
    if cfg.stag:
        G = cfg.stag
        A.wrap = (s_ae, 2048); B.wrap = (s_be, 1024 * 8192)
        o += [I(f's_add_u32 s{s_ae}, s{A.s_off}, 2048'), I(f's_add_u32 s{s_be}, s{B.s_off}, {1024 * 8192}'),
              I(f's_and_b32 s{s_t}, s{S_MT}, {G - 1}'), I(f's_mul_i32 s{s_t}, s{s_t}, {8 // G}'), I(f's_add_u32 s{s_t}, s{s_t}, s{S_XCD}'),
              I(f's_and_b32 s{s_t}, s{s_t}, 7'), I(f's_lshl_b32 s101, s{s_t}, 8'), I(f's_add_u32 s{A.s_off}, s{A.s_off}, s101'),
              I(f's_lshl_b32 s101, s{s_t}, 20'), I(f's_add_u32 s{B.s_off}, s{B.s_off}, s101')]
    o = expand(o)
    qs = [I(f's_mul_i32 s{QX.s_off}, s{S_MT}, {256 * 896}'), I(f's_lshl_b32 s{QW.s_off}, s{S_HEAD}, 9')]
    if isV: qs += [I(f's_add_u32 s{QW.s_off}, s{QW.s_off}, 256')]
    qs += [I(f's_lshl_b32 s{s_t}, s{s_wn}, 7')] + QX.setup(TMP, s_t)
    qs += [I(f's_lshl_b32 s{s_t}, s{s_wm}, 2')] + QW.setup(TMP, s_t)
    qs = [Grp([i, j]) if False else i for i, j in zip(qs, qs)]
    o += ST.mark('setup')
    ZA = 192
    if isV: zacc = lambda i, j: ZA + 4 * (i * 7 + j); zM, zN = ZX, ZW; fM, fN = (64, 100), (72, 108)
    else:   zacc = lambda i, j: ZA + 4 * (i * 2 + j); zM, zN = ZW, ZX; fM, fN = (72, 108), (64, 100)
    bgz = BG()
    a0 = A.dma_all(0)
    bgz.at(6, a0[:5], 0, 10); bgz.at(7, a0[5:], 0, 10)
    bgz.at(8, B.dma_all(0), 0, 10); bgz.at(10, B.dma_all(1), 0, 10)
    a1 = A.dma_all(1)
    bgz.at(12, a1[:5] + [], 0, 10); bgz.at(13, a1[5:] + B.dma_all(2), 0, 13)
    zall = {(ZX.name, g) for g in range((cfg.z_first + 1) // 2)} | {(ZW.name, g) for g in range(cfg.z_first)}
    zpro, zsteps = gemm_steps(zM, zN, 14, fM, fN, zacc, accp='v', bg=bgz, issued=zall, tail_bar=True, sync_pos=0.85, rd_end=9,
                              first=cfg.z_first if cfg.z_first < 8 else None, late_rate=cfg.z_rate)
    VC1 = 63
    zregs = [ZA + r for r in range(56)]
    ze = [I(f'v_mov_b32 v{VC1}, {f2h(-2.0 * LOG2E * math.sqrt(2.0 / math.pi) * 0.044715)}')]
    ze += gelu_stream(zregs, [TMP + i for i in range(4)], VC1)
    ln = []
    spin = []
    if not isV:
        ze += [I(f's_lshl_b32 s{s_zst}, s{S_TB}, 3'), I(f's_lshl_b32 s{s_t}, s{S_WAVE}, 1'), I(f's_add_u32 s{s_zst}, s{s_zst}, s{s_t}'),
               I(f's_mul_i32 s{s_zst}, s{s_zst}, 56'), I(f's_mul_i32 s{s_t}, s{S_XCD}, 7'), I(f's_add_u32 s{s_zst}, s{s_zst}, s{s_t}'),
               I(f's_lshl_b32 s{s_zst}, s{s_zst}, 9'), I(f's_add_u32 s{s_zst}, s{s_zst}, {Z1F}'),
               I(f'v_lshlrev_b32 v{TMP+4}, 3, v{V_LANE}')]
        for j in range(2):
            for i in range(7):
                r = zacc(i, j)
                ze += [I(f'v_cvt_pk_bf16_f32 v{r}, v{r}, v{r+1}'), I(f'v_cvt_pk_bf16_f32 v{r+1}, v{r+2}, v{r+3}'),
                       I(f'buffer_store_dwordx2 {vr(r,2)}, v{TMP+4}, {sr(SRD_WS,4)}, s{s_zst} offen offset:{i*512} {cfg.stf}'.rstrip(), tag='z1')]
            if j == 0: ze += [I(f's_add_u32 s{s_zst}, s{s_zst}, {56*512}')]
    else:
        M = 44
        tok = [(i, r) for i in range(2) for r in range(4)]
        for j in range(1, 7):
            for k, (i, r) in enumerate(tok):
                src = zacc(i, 0) + r if j == 1 else M + 2 * k
                ze += [I(f'v_add_f32 v{M+2*k}, v{src}, v{zacc(i,j)+r}')]
        for c in ('row_ror:8', 'row_ror:4', 'row_ror:2', 'row_ror:1'):
            ze += [dpp_add(M + 2 * k, M + 2 * k, c) for k in range(8)]
        ze += [I(f'v_mul_f32 v{M+2*k}, {f2h(1.0/112)}, v{M+2*k}') for k in range(8)]
        for j in range(7):
            for h in range(2):
                ks = list(range(4 * h, 4 * h + 4))
                ze += [I(f'v_sub_f32 v{TMP+(k&3)}, v{zacc(tok[k][0],j)+tok[k][1]}, v{M+2*k}') for k in ks]
                if j == 0: ze += [I(f'v_mul_f32 v{M+2*k+1}, v{TMP+(k&3)}, v{TMP+(k&3)}') for k in ks]
                else: ze += [I(f'v_fmac_f32 v{M+2*k+1}, v{TMP+(k&3)}, v{TMP+(k&3)}') for k in ks]
        for c in ('row_ror:8', 'row_ror:4', 'row_ror:2', 'row_ror:1'):
            ze += [dpp_add(M + 2 * k + 1, M + 2 * k + 1, c) for k in range(8)]
        VS = TMP + 4
        ze += [I(f's_lshl_b32 s{s_sst}, s{S_TB}, 7'), I(f's_lshl_b32 s{s_t}, s{S_WAVE}, 5'), I(f's_add_u32 s{s_sst}, s{s_sst}, s{s_t}'),
               I(f's_lshl_b32 s{s_sst}, s{s_sst}, 3'), I(f's_add_u32 s{s_sst}, s{s_sst}, {STATS}'),
               I(f's_lshl_b32 s{s_t}, s{S_XCD}, 14'), I(f's_add_u32 s{s_zst}, s{s_sst}, s{s_t}'),
               I(f'v_lshrrev_b32 v{VS}, 4, v{V_LANE}'), I(f'v_lshlrev_b32 v{VS}, 6, v{VS}'),
               I(f'v_and_b32 v{VS+1}, 15, v{V_LANE}'), I(f'v_cmp_eq_u32 vcc, 0, v{VS+1}'),
               I(f'v_mov_b32 v{VS+1}, {OOB}'), I(f'v_cndmask_b32 v{VS+1}, v{VS+1}, v{VS}, vcc')]
        for q in range(4):
            ze += [I(f'buffer_store_dwordx4 {vr(M+4*q,4)}, v{VS+1}, {sr(SRD_WS,4)}, s{s_zst} offen offset:{16*q} sc1', tag='stat')]
        for j in range(7):
            r0, r1 = zacc(0, j), zacc(1, j)
            ze += [I(f'v_cvt_pk_bf16_f32 v{r0}, v{r0}, v{r0+1}'), I(f'v_cvt_pk_bf16_f32 v{r0+1}, v{r0+2}, v{r0+3}'),
                   I(f'v_cvt_pk_bf16_f32 v{r0+2}, v{r1}, v{r1+1}'), I(f'v_cvt_pk_bf16_f32 v{r0+3}, v{r1+2}, v{r1+3}')]
        sig_pre = [I(f'v_lshl_add_u32 v{VS}, s{S_WAVE}, 6, v{V_LANE}'), I(f'v_cmp_eq_u32 vcc, 0, v{VS}'),
                   I(f's_lshl_b32 s{s_poll}, s{S_TB}, 2'),
                   I(f'v_mov_b32 v{VS}, {OOB}'), I(f'v_cndmask_b32 v{VS}, v{VS}, 0, vcc'), I(f'v_mov_b32 v{VS+1}, 1'), W_vm('stat')]
        sig_post = [I(f'buffer_atomic_add v{VS+1}, v{VS}, {sr(SRD_DBG,4)}, s{s_poll} offen', tag='sig')]
        L = 44
        F = zacc(1, 0)
        ln += [I(f'v_mov_b32 v{VS}, 0'),
               I(f'buffer_load_dword v{VS+1}, v{VS}, {sr(SRD_DBG,4)}, s{s_poll} offen sc1', tag='poll'),
               I(f'v_and_b32 v{VS+2}, 7, v{V_LANE}'), I(f'v_lshlrev_b32 v{VS+2}, 14, v{VS+2}'),
               I(f'v_lshrrev_b32 v{VS+3}, 3, v{V_LANE}'), I(f'v_lshl_add_u32 v{VS+2}, v{VS+3}, 5, v{VS+2}'),
               W_vm('poll'), Grp([I(f'v_readfirstlane_b32 s{s_t}, v{VS+1}'), I(f's_cmp_ge_u32 s{s_t}, 8'), I('s_cbranch_scc0 L1_spin'), I('L1_spin_ret:')])]
        spin = [I('L1_spin:'), I('s_sleep 2'), I(f'buffer_load_dword v{VS+1}, v{VS}, {sr(SRD_DBG,4)}, s{s_poll} offen sc1'), I('s_waitcnt vmcnt(0)'),
                I(f'v_readfirstlane_b32 s{s_t}, v{VS+1}'), I(f's_cmp_ge_u32 s{s_t}, 8'), I('s_cbranch_scc0 L1_spin'), I('s_branch L1_spin_ret')]
        ln += [I(f'buffer_load_dwordx4 {vr(F,4)}, v{VS+2}, {sr(SRD_WS,4)}, s{s_sst} offen sc1', tag='ld_stat'),
               I(f'buffer_load_dwordx4 {vr(F+4,4)}, v{VS+2}, {sr(SRD_WS,4)}, s{s_sst} offen offset:16 sc1', tag='ld_stat'),
               I(f'; gap', 'dir')]
        ln2 = [W_vm('ld_stat')]
        MU = F + 8; Q2 = F + 12
        red = ('quad_perm:[1,0,3,2]', 'quad_perm:[2,3,0,1]', 'row_half_mirror')
        ln2 += [dpp_add(MU + k, F + 2 * k, red[0]) for k in range(4)]
        for c in red[1:]: ln2 += [dpp_add(MU + k, MU + k, c) for k in range(4)]
        ln2 += [I(f'v_mul_f32 v{MU+k}, 0.125, v{MU+k}'.replace('0.125', f2h(0.125))) for k in range(4)]
        ln2 += [I(f'v_sub_f32 v{Q2+k}, v{F+2*k}, v{MU+k}') for k in range(4)]
        ln2 += [I(f'v_mul_f32 v{Q2+k}, v{Q2+k}, v{Q2+k}') for k in range(4)]
        ln2 += [I(f'v_fmamk_f32 v{Q2+k}, v{Q2+k}, {f2h(112.0)}, v{F+2*k+1}') for k in range(4)]
        for c in red: ln2 += [dpp_add(Q2 + k, Q2 + k, c) for k in range(4)]
        ln2 += [I(f'v_mul_f32 v{Q2+k}, {f2h(1.0/896)}, v{Q2+k}') for k in range(4)]
        ln2 += [I(f'v_add_f32 v{Q2+k}, {f2h(1e-5)}, v{Q2+k}') for k in range(4)]
        ln2 += [I(f'v_rsq_f32 v{Q2+k}, v{Q2+k}') for k in range(4)]
        ln2 += [I(f'v_mul_f32 v{MU+k}, v{MU+k}, v{Q2+k}') for k in range(4)]
        for src, hi in ((Q2, L), (MU, L + 4)):
            ln2 += [I(f'v_mov_b32 v{hi+k}, v{src+k}') for k in range(4)]
            ln2 += [I(f'v_mov_b32_dpp v{hi+k}, v{src+k} row_ror:8 row_mask:0xf bank_mask:0x3') for k in range(4)]
            ln2 += [I(f'v_mov_b32_dpp v{src+k}, v{src+k} row_ror:8 row_mask:0xf bank_mask:0xc') for k in range(4)]
        rs = lambda k: Q2 + k if k < 4 else L + k - 4
        mr = lambda k: MU + k if k < 4 else L + 4 + k - 4
        ln2 += [I(f's_lshl_b32 s{s_zst}, s{S_TB}, 2'), I(f's_add_u32 s{s_zst}, s{s_zst}, s{S_WAVE}'), I(f's_mul_i32 s{s_zst}, s{s_zst}, 56'),
                I(f's_mul_i32 s{s_t}, s{S_XCD}, 7'), I(f's_add_u32 s{s_zst}, s{s_zst}, s{s_t}'), I(f's_lshl_b32 s{s_zst}, s{s_zst}, 10'),
                I(f's_add_u32 s{s_zst}, s{s_zst}, {Z2NF}')]
        for j in range(7):
            r0 = zacc(0, j)
            for h in range(2):
                ds_ = (2 * h, 2 * h + 1)
                for d in ds_:
                    ln2 += [I(f'v_lshlrev_b32 v{TMP+2*(d&1)}, 16, v{r0+d}'), I(f'v_and_b32 v{TMP+2*(d&1)+1}, 0xffff0000, v{r0+d}')]
                for d in ds_:
                    ln2 += [I(f'v_fma_f32 v{TMP+2*(d&1)}, v{TMP+2*(d&1)}, v{rs(2*d)}, -v{mr(2*d)}'),
                            I(f'v_fma_f32 v{TMP+2*(d&1)+1}, v{TMP+2*(d&1)+1}, v{rs(2*d+1)}, -v{mr(2*d+1)}')]
                for d in ds_:
                    ln2 += [I(f'v_cvt_pk_bf16_f32 v{r0+d}, v{TMP+2*(d&1)}, v{TMP+2*(d&1)+1}')]
            ln2 += [I(f'buffer_store_dwordx4 {vr(r0,4)}, v{V_L16}, {sr(SRD_WS,4)}, s{s_zst} offen offset:{(j%4)*1024} {cfg.stf}'.rstrip(), tag='z2n')]
            if j == 3: ln2 += [I(f's_add_u32 s{s_zst}, s{s_zst}, 4096')]
    bgkv = BG()
    pre_kv = []
    NH = 8
    if cfg.weave_z: bgkv.add(chop(ze, 0, NH, 64))
    else: pre_kv += [I('s_nop 7')] + ze
    if isV:
        bgkv.at(NH + 1, sig_pre, 32, 50); bgkv.at(NH + 2, sig_post, 1, 2)
        bgkv.at(24, ln, 0, 40)
        bgkv.add(chop(ln2, 25, 29, 64))
    bgkv.at(NH, giss, 0, 30); bgkv.at(NH, qs, 31, 63)
    bgkv.add(chop(gfin, NH + 1, NH + 3, 64, 0.05, 0.45))
    qx0 = QX.dma_all(0)
    bgkv.at(28, qx0 + QW.dma_all(0) + QW.dma_all(1), 0, 45)
    bgkv.at(29, QX.dma_all(1) + QW.dma_all(2) + QW.dma_all(3), 0, 45)
    bgkv.at(30, QW.dma_all(4) + QW.dma_all(5), 0, 30)
    bgkv.at(31, QX.dma_all(2) + QW.dma_all(6) + QW.dma_all(7), 0, 45)
    acc = lambda i, j: 4 * (i * 8 + j)
    opM, opN = (A, B) if isV else (B, A)
    kvissued = {('A', 0), ('A', 1), ('B', 0), ('B', 1), ('B', 2)}
    kpro, ksteps = gemm_steps(opM, opN, 32, (64, 128), (96, 160), acc, bg=bgkv, issued=kvissued, tail_bar=True)
    if cfg.pf:
        i = [k for k, x in enumerate(kpro) if x.kind == 'pwait'][0]
        kpro = kpro[:i] + touch_buf(SRD_WQ, 255, s_st, 14) + kpro[i:]
    DT = 20
    dr = []
    if not isV:
        dr += [I(f's_lshl_b32 s{s_st}, s{S_HEAD}, 7'), I(f's_lshl_b32 s{s_t}, s{S_MT}, 4'), I(f's_add_u32 s{s_st}, s{s_st}, s{s_t}'),
               I(f's_lshl_b32 s{s_t}, s{s_wn}, 3'), I(f's_add_u32 s{s_st}, s{s_st}, s{s_t}'), I(f's_lshl_b32 s{s_st}, s{s_st}, 3'),
               I(f's_lshl_b32 s{s_t}, s{s_wm}, 2'), I(f's_add_u32 s{s_st}, s{s_st}, s{s_t}'), I(f's_lshl_b32 s{s_st}, s{s_st}, 10')]
        for j in range(8):
            for p in range(4):
                src = [acc(2 * p, j) + r for r in range(4)] + [acc(2 * p + 1, j) + r for r in range(4)]
                dr += pack_store(src, 'a', DT, V_L16, s_st, p * 1024, flags=cfg.stf)
            dr += [I(f's_add_u32 s{s_st}, s{s_st}, 8192')]
    else:
        dr += [I(f's_lshl_b32 s{s_st}, s{S_HEAD}, 6'), I(f's_lshl_b32 s{s_t}, s{S_MT}, 3'), I(f's_add_u32 s{s_st}, s{s_st}, s{s_t}'),
               I(f's_lshl_b32 s{s_t}, s{s_wm}, 2'), I(f's_add_u32 s{s_st}, s{s_st}, s{s_t}'), I(f's_lshl_b32 s{s_st}, s{s_st}, 4'),
               I(f's_lshl_b32 s{s_t}, s{s_wn}, 3'), I(f's_add_u32 s{s_st}, s{s_st}, s{s_t}'), I(f's_lshl_b32 s{s_st}, s{s_st}, 10'),
               I(f's_add_u32 s{s_st}, s{s_st}, {VF}')]
        for p in range(4):
            for j in range(8):
                src = [acc(2 * p, j) + r for r in range(4)] + [acc(2 * p + 1, j) + r for r in range(4)]
                dr += pack_store(src, 'a', DT, V_L16, s_st, (j % 4) * 1024, flags=cfg.stf)
                if j == 3: dr += [I(f's_add_u32 s{s_st}, s{s_st}, 4096')]
            dr += [I(f's_add_u32 s{s_st}, s{s_st}, {16384 - 4096}')]
    bgq = BG()
    pre_q = []
    if cfg.weave_kv: bgq.add(chop(dr, 0, 14, 32))
    else: pre_q += [I('s_nop 7')] + dr
    qacc = lambda i, j: 128 + 4 * (i * 8 + j)
    qissued = {('qx', g) for g in range(3)} | {('qw', g) for g in range(8)}
    qpro, qsteps = gemm_steps(QW, QX, 14, (32, 80), (48, 96), qacc, accp='v', bg=bgq, issued=qissued)
    post = [I(f's_lshl_b32 s{s_st2}, s{S_HEAD}, 7'), I(f's_lshl_b32 s{s_t}, s{S_MT}, 4'), I(f's_add_u32 s{s_st2}, s{s_st2}, s{s_t}'),
            I(f's_lshl_b32 s{s_t}, s{s_wn}, 3'), I(f's_add_u32 s{s_st2}, s{s_st2}, s{s_t}'), I(f's_lshl_b32 s{s_st2}, s{s_st2}, 3'),
            I(f's_lshl_b32 s{s_t}, s{s_wm}, 1'), I(f's_add_u32 s{s_st2}, s{s_st2}, s{s_t}'), I(f's_lshl_b32 s{s_st2}, s{s_st2}, 10'),
            I(f's_add_u32 s{s_st2}, s{s_st2}, {QF + (4096 if isV else 0)}')]
    k = 0
    for j in range(8):
        for p in range(2):
            src = [qacc(2 * p, j) + r for r in range(4)] + [qacc(2 * p + 1, j) + r for r in range(4)]
            post += pack_store(src, 'v', 32 + 12 * (k % 4), V_L16, s_st2, p * 1024, scale=f2h(QSCALE), flags=cfg.stf); k += 1
        post += [I(f's_add_u32 s{s_st2}, s{s_st2}, 8192')]
    if cfg.pfsp: post += touch_buf(SRD_PF, 31, s_st, 15)
    if cfg.pf and cfg.nextcode: post += touch_code(SRD_C, 'l2_kernel', 'out_kernel_stop', 30, s_st, per_xcd=False)
    p0 = ('lin', o + zpro + ST.mark('zpro'))
    p2 = ('lin', ST.mark('zend') + pre_kv + kpro + ST.mark('kpro'))
    for t in range(32): ksteps[t] = ST.mark(f'xk{t}') + ksteps[t]
    p4 = ('lin', ST.mark('kend') + pre_q + qpro + ST.mark('qpro'))
    for t in range(14): qsteps[t] = ST.mark(f'xq{t}') + qsteps[t]
    p6 = ('lin', ST.mark('qend') + post + (ST.mark('post') + [I('s_waitcnt vmcnt(0)')] + ST.mark('drain') if cfg.diag else []))
    parts = [p0, ('steps', zsteps, 99, 'x', 0), p2, ('steps', ksteps, 4, f'L1_{nm}_loop', s_cnt), p4, ('steps', qsteps, 99, 'x', 0), p6]
    return finish_multi(parts), spin

def kernel_l1(name='l1_kernel', cfg=Cfg()):
    cfg.name = name
    ST = Stamps(cfg.diag, 74, cfg.only or ['start', 'dma0', 'zpro', 'zend', 'kpro', 'kend', 'qend', 'post', 'drain'])
    o = kernel_head(name, 256) + ST.rt() + ST.mark('start')
    o += srd(SRD_XX, P_X, 2048 * 896) + srd(SRD_WIN, P_WIN, 448 * 3584) + srd(SRD_CKV, P_CKV, 2048 * 2048) + srd(SRD_DBG, P_DBG, 256)
    o += [I(f's_and_b32 s{S_XCD}, s2, 7'), I(f's_lshr_b32 s{S_C}, s2, 3'),
          I(f's_and_b32 s{S_MT}, s{S_C}, 7'), I(f's_lshr_b32 s{S_SEL}, s{S_C}, 3'),
          I(f's_and_b32 s{S_HEAD}, s{S_SEL}, 1'), I(f's_lshl_b32 s{S_TB}, s{S_MT}, 1'), I(f's_add_u32 s{S_TB}, s{S_TB}, s{S_HEAD}'),
          I(f's_lshl_b32 s100, s{S_XCD}, 1'), I(f's_add_u32 s{S_HEAD}, s{S_HEAD}, s100'),
          I(f's_cmp_ge_u32 s{S_SEL}, 2'), I('s_cbranch_scc1 L1_V')]
    a, _ = variant(False, cfg, ST)
    b, spin = variant(True, cfg, ST)
    o += a + [I('s_branch L1_done'), I('L1_V:')] + b + [I('L1_done:')] + ST.rt() + ST.dump(cfg.kidx)
    o += kernel_tail(name) + spin + kernel_stop(name)
    return fix_hazards(ST.finalize(o, name))

if __name__ == '__main__':
    import sys
    ks = []
    def mk(name, **kw):
        cfg = Cfg(); cfg.diag = True
        for k, v in kw.items(): setattr(cfg, k, v)
        prog = kernel_l1(name, cfg)
        txt = [I(i.t.replace('L1_', name + '_L1_'), i.kind) for i in prog]
        ks.append((name, txt, 256, 163840, ''))
    mk('a_kernel')
    mk('b_kernel', only=['xk0', 'xk1', 'xk2', 'xk4', 'xk6', 'xk8', 'xk11', 'xk23', 'xk25', 'xk28', 'kend'])
    mk('c_kernel', weave_z=False, weave_kv=False)
    mk('d_kernel', stf='sc1')
    open('t1.s', 'w').write(assemble_file(ks))
```

```python
from common import *
from att import *
from l1 import Cfg
import sp as SPM

MAXJ = 4
S_JT = 44
S_JW = 76

def enc_att(h, qb, c0, n, nu, role, pid): return [1, h | qb << 8 | role << 16, c0 | n << 8 | nu << 16, pid]
def enc_sp(tt, ft): return [2, tt | ft << 8, 0, 0]

def table_v1(with_sp=False, xoff=0):
    jobs = [[] for _ in range(256)]
    for b in range(256):
        x = (b + xoff) & 7; c = b >> 3
        h = 2 * x + (c & 1); k = c >> 1
        i = k & 7
        pid = h * 8 + i
        L = 15 - i; nL = 2 * L + 2
        na = nL - 18
        if k < 8:
            jobs[b].append(enc_att(h, L, na, 18, 16, 2 if na > 0 else 0, pid))
        else:
            if na > 0: jobs[b].append(enc_att(h, L, 0, na, na, 1, pid))
            jobs[b].append(enc_att(h, i, 0, 2 * i + 2, 2 * i, 0, 0))
    return jobs

def table_sched(path='sched.json'):
    import json
    bins = json.load(open(path))
    jobs = [[] for _ in range(256)]
    for b in range(256):
        x = b & 7; c = b >> 3
        for s in bins[c]:
            if s[0] == 'sp': jobs[b].append(enc_sp(x, s[1]))
            else:
                _, hh, qb, c0, n, role = s
                h = 2 * x + hh
                nu = n - 2 if c0 + n == 2 * qb + 2 else n
                jobs[b].append(enc_att(h, qb, c0, n, nu, role, h * 16 + qb))
    return jobs

def table_text(jobs, label):
    o = ['.p2align 6', f'{label}:']
    npf = [0]
    for j in jobs:
        assert len(j) < MAXJ
        w = []
        for k, e in enumerate(j):
            f = 0
            if k == 0 and len(j) > 1 and npf[0] < 140: f = 256 | npf[0] << 16; npf[0] += 1
            w += [e[0] | f] + e[1:]
        w += [0] * (4 * MAXJ - len(w))
        o.append('.long ' + ', '.join(str(x) for x in w))
    assert npf[0] in (0, 140), npf
    return '\n'.join(o)

def kernel_l2(name, jobs, cfg, nwg=256, kidx=1, with_sp=True, with_att=True):
    ST = Stamps(cfg.diag, 80, cfg.only or ['job', 'zero', 'qk0', 'loop', 'final', 'stats', 'end', 'pro'])
    o = kernel_head(name, nwg) + ST.rt() + ST.mark('start')
    pfc = []
    if cfg.pf:
        o += touch_code(16, name, name + '_stop', 255, 100)
        pfc = [I(f's_bitcmp1_b32 s{S_JW}, 8'), I(f's_cbranch_scc0 {name}_next'), I(f's_lshr_b32 s{S_JW}, s{S_JW}, 16')] + srd(16, P_WO, 4096 * 896) + \
              [I(f's_cmp_lt_u32 s{S_JW}, 112'), I(f's_cbranch_scc1 {name}_pf1')] + srd(16, P_WOUT, 896 * 896) + \
              [I(f's_sub_u32 s{S_JW}, s{S_JW}, 112'), I(f'{name}_pf1:')] + touch_buf(16, 255, 100, 15, s_idx=S_JW)
    o += [I(f's_getpc_b64 s[{S_JT}:{S_JT+1}]'),
          I(f's_add_u32 s{S_JT}, s{S_JT}, {name}_jt@rel32@lo+4'), I(f's_addc_u32 s{S_JT+1}, s{S_JT+1}, {name}_jt@rel32@hi+12'),
          I(f's_lshl_b32 s100, s2, 6'),
          I(f's_add_u32 s{S_JT}, s{S_JT}, s100'), I(f's_addc_u32 s{S_JT+1}, s{S_JT+1}, 0'),
          I(f'{name}_next:'), I(f's_load_dwordx4 s[{S_JW}:{S_JW+3}], s[{S_JT}:{S_JT+1}], 0'),
          I(f's_add_u32 s{S_JT}, s{S_JT}, 16'), I(f's_addc_u32 s{S_JT+1}, s{S_JT+1}, 0'), I('s_waitcnt lgkmcnt(0)'),
          I(f's_cmp_eq_u32 s{S_JW}, 0'), I(f's_cbranch_scc1 {name}_fin'),
          I(f's_bitcmp1_b32 s{S_JW}, 1'), I(f's_cbranch_scc1 {name}_sp'),
          I(f's_and_b32 s{AS.H}, s{S_JW+1}, 255'), I(f's_bfe_u32 s{AS.QB}, s{S_JW+1}, 0x80008'), I(f's_lshr_b32 s{AS.ROLE}, s{S_JW+1}, 16'),
          I(f's_and_b32 s{AS.C0}, s{S_JW+2}, 255'), I(f's_bfe_u32 s{AS.N}, s{S_JW+2}, 0x80008'), I(f's_lshr_b32 s{AS.NU}, s{S_JW+2}, 16'),
          I(f's_mov_b32 s{AS.PID}, s{S_JW+3}')]
    if with_att: o += att_job(ST)
    o += [I(f'{name}_jend:'), I('s_barrier')] + pfc + [I(f's_branch {name}_next')]
    o += [I(f'{name}_sp:')] + (SPM.sp_job(S_JW + 1, ST) if with_sp else []) + [I(f's_branch {name}_jend')]
    o += [I(f'{name}_fin:')] + ST.rt() + ST.dump(kidx)
    o += kernel_tail(name) + kernel_stop(name)
    return fix_hazards(ST.finalize(o, name)), table_text(jobs, f'{name}_jt')
```

```python
from common import *
from l1 import f2h, OOB, Cfg
K = 1024

def out_variant(nfr, cfg, ST, L, sa, regs):
    s_x, s_c, s_part, s_tb, s_jt, s_t, s_cnt, s_st, s_g, s_u, s_i, s_j = regs
    SRD_W, SRD_O = 4, 8
    va = Alloc(2, 32)
    V_L16 = 0
    A = OpD('a', SRD_WS, 2, 10, 176, 8192, V_L16, sa)
    W = OpT('w', SRD_W, 896, 32 * nfr, nfr, [4 * nfr * 256 * i for i in range(16)], va, sa, cnat=True)
    TMP = va.get(4)
    o = [
          I(f's_mul_i32 s{A.s_off}, s{s_tb}, 156'), I(f's_mul_i32 s{s_t}, s{s_part}, 39'), I(f's_add_u32 s{A.s_off}, s{A.s_off}, s{s_t}'),
          I(f's_lshl_b32 s{A.s_off}, s{A.s_off}, 13'), I(f's_add_u32 s{A.s_off}, s{A.s_off}, {AF}'),
          I(f's_lshl_b32 s{s_t}, s{S_WAVE}, 11'), I(f's_add_u32 s{A.s_off}, s{A.s_off}, s{s_t}'),
          I(f's_mul_i32 s{W.s_off}, s{s_part}, {39 * 32 * 896}'), I(f's_lshl_b32 s{s_j}, s{s_jt}, 8'), I(f's_add_u32 s{W.s_off}, s{W.s_off}, s{s_j}'),
          I(f's_mul_i32 s{s_t}, s{S_WAVE}, {8 * 896}'), I(f's_add_u32 s{s_j}, s{s_j}, s{s_t}'),
          I(f'v_lshlrev_b32 v{V_L16}, 4, v{V_LANE}'), I(f's_mov_b32 s{s_t}, 0')]
    ws_ = W.setup(TMP, s_t)
    o += ws_[:W._ndma]
    mid = expand(ws_[W._ndma:])
    base_dma = W.dma_all
    def dma_sw(gi):
        d = base_dma(gi)
        if gi == 11:
            d = [Grp([I(f's_cmp_eq_u32 s{s_part}, 3'), I(f's_cselect_b32 s{SRD_W}, s{P_WOUT}, s{SRD_W}'), I(f's_cselect_b32 s{SRD_W+1}, s{P_WOUT+1}, s{SRD_W+1}'),
                      I(f's_cselect_b32 s{SRD_W+2}, {896 * 896}, s{SRD_W+2}'), I(f's_cselect_b32 s{W.s_off}, s{s_j}, s{W.s_off}')])] + d
        return d
    W.dma_all = dma_sw
    ACC = 104
    acc = lambda i, j: ACC + 4 * (j * nfr + i)
    T = 96
    NP = nfr
    mid += [I(f's_lshl_b32 s{s_g}, s{s_tb}, 2'), I(f's_add_u32 s{s_g}, s{s_g}, s{s_jt}'),
            I(f's_lshl_b32 s{s_u}, s{s_g}, 4'), I(f's_add_u32 s{s_u}, s{s_u}, s{S_WAVE}'), I(f's_lshl_b32 s{s_u}, s{s_u}, 13'),
            I(f's_add_u32 s{s_u}, s{s_u}, {OUTP}'),
            I(f's_lshl_b32 s{s_t}, s{s_part}, 15'), I(f's_add_u32 s{s_st}, s{s_u}, s{s_t}'),
            I(f's_lshl_b32 s{s_g}, s{s_g}, 8'), I(f's_add_u32 s{s_g}, s{s_g}, {FLG + 128}'),
            I(f'v_cmp_eq_u32 vcc, 0, v{V_LANE}'), I(f'v_mov_b32 v{T}, {OOB}'), I(f'v_mov_b32 v{T + 1}, 1'), I(f'v_cndmask_b32 v{T}, v{T}, 0, vcc'),
            I(f'v_and_b32 v{T + 2}, 15, v{V_LANE}'), I(f'v_mul_u32_u24 v{T + 2}, 896, v{T + 2}'), I(f'v_lshrrev_b32 v{T + 3}, 4, v{V_LANE}'),
            I(f'v_lshl_add_u32 v{T + 2}, v{T + 3}, 3, v{T + 2}'), I(f'v_mov_b32 v{T + 3}, 0'),
            I(f's_lshl_b32 s{s_i}, s{s_tb}, 7'), I(f's_lshl_b32 s{s_t}, s{S_WAVE}, 5'), I(f's_add_u32 s{s_i}, s{s_i}, s{s_t}'),
            I(f's_mul_i32 s{s_i}, s{s_i}, 896'), I(f's_lshl_b32 s{s_t}, s{s_jt}, 8'), I(f's_add_u32 s{s_i}, s{s_i}, s{s_t}')]
    pro, steps = gemm_steps(W, A, 39, (32, 64), (0, 0), acc, accp='v', sync_pos=0.9, rd_end=2 * nfr * 0.75, gs=3, mid=mid + ST.mark('issue'), first=cfg.out_first, late_rate=cfg.out_rate)
    post = [I('s_nop 4')]
    for p in range(3): post += [I(f's_cmp_eq_u32 s{s_part}, {p + 1}'), I(f's_cbranch_scc1 {L}_p{p + 1}')]
    for part in range(4):
        post += [I(f'{L}_p{part}:')]
        for u in range(NP):
            a = ACC + 8 * u
            if u % 4 != part:
                post += [I(f'v_cvt_pk_bf16_f32 v{a + k}, v{a + 2 * k}, v{a + 2 * k + 1}') for k in range(4)]
                post += [I(f'buffer_store_dwordx4 {vr(a, 4)}, v{V_L16}, {sr(SRD_WS,4)}, s{s_st} offen offset:{(u % 4) * 1024} sc1')]
            if u % 4 == 3: post += [I(f's_add_u32 s{s_st}, s{s_st}, 4096')]
        post += [I('s_waitcnt vmcnt(0)'), I('s_barrier')] + ST.mark('stored') + [
                 I(f's_cmp_eq_u32 s{S_WAVE}, 0'), I(f's_cbranch_scc0 {L}_w{part}'),
                 I(f'buffer_atomic_add v{T + 1}, v{T}, {sr(SRD_WS,4)}, s{s_g} offen'),
                 I(f'{L}_poll{part}:'), I(f'buffer_load_dword v{T + 4}, v{T + 3}, {sr(SRD_WS,4)}, s{s_g} offen sc1'), I('s_waitcnt vmcnt(0)'),
                 I(f'v_readfirstlane_b32 s{s_t}, v{T + 4}'), I(f's_cmp_ge_u32 s{s_t}, 4'), I(f's_cbranch_scc0 {L}_poll{part}'),
                 I(f'{L}_w{part}:'), I('s_barrier')] + ST.mark('poll')
        us = [u for u in range(NP) if u % 4 == part]
        body = []
        R = 176
        for k, u in enumerate(us):
            for q, p in enumerate([p for p in range(4) if p != part]):
                body += [I(f's_add_u32 s{s_st}, s{s_u}, {p * 32768 + u * 1024}'),
                         I(f'buffer_load_dwordx4 {vr(R + 12 * k + 4 * q, 4)}, v{V_L16}, {sr(SRD_WS,4)}, s{s_st} offen sc1', tag=('p', k, q))]
        for k, u in enumerate(us):
            a = ACC + 8 * u
            for q in range(3):
                b = R + 12 * k + 4 * q
                body += [W_vm(('p', k, q))]
                for kk in range(4):
                    body += [I(f'v_lshlrev_b32 v{32 + 2 * kk}, 16, v{b + kk}'), I(f'v_and_b32 v{33 + 2 * kk}, 0xffff0000, v{b + kk}')]
                body += [I(f'v_pk_add_f32 {vr(a + 2 * kk, 2)}, {vr(a + 2 * kk, 2)}, {vr(32 + 2 * kk, 2)}') for kk in range(4)]
            body += [I(f'v_cvt_pk_bf16_f32 v{a + kk}, v{a + 2 * kk}, v{a + 2 * kk + 1}') for kk in range(4)]
            jj, i0 = (2 * u) // nfr, (2 * u) % nfr
            body += [I(f's_add_u32 s{s_t}, s{s_i}, {jj * 16 * 896 + i0 * 32}'),
                     I(f'buffer_store_dwordx2 {vr(a, 2)}, v{T + 2}, {sr(SRD_O,4)}, s{s_t} offen', tag='o'),
                     I(f'buffer_store_dwordx2 {vr(a + 2, 2)}, v{T + 2}, {sr(SRD_O,4)}, s{s_t} offen offset:32', tag='o')]
        post += resolve_waits(body) + [I('s_branch OUT_fin')]
    for t in range(39): steps[t] = ST.mark(f'xo{t}') + steps[t]
    main = finish_multi([('lin', expand(o) + pro + ST.mark('pro')), ('steps', steps, 99, 'OUT_loop', s_cnt)])
    return main + ST.mark('loop') + post

def kernel_out(name, cfg):
    ST = Stamps(cfg.diag, 70, cfg.only)
    SRD_W, SRD_O = 4, 8
    regs = list(range(50, 62))
    s_x, s_c, s_part, s_tb, s_jt, s_t = regs[:6]
    o = kernel_head(name, 256) + ST.rt() + ST.mark('start')
    o += srd(SRD_W, P_WO, 4096 * 896) + srd(SRD_O, P_OUT, 2048 * 896)
    o += [I(f's_and_b32 s{s_x}, s2, 7'), I(f's_lshr_b32 s{s_c}, s2, 3'), I(f's_lshr_b32 s{s_part}, s{s_x}, 1'),
          I(f's_and_b32 s{s_jt}, s{s_c}, 3'), I(f's_and_b32 s{s_tb}, s{s_x}, 1'), I(f's_lshl_b32 s{s_tb}, s{s_tb}, 3'),
          I(f's_lshr_b32 s{s_t}, s{s_c}, 2'), I(f's_add_u32 s{s_tb}, s{s_tb}, s{s_t}')]
    if cfg.pf: o += touch_code(16, name, name + '_stop', 103, 100)
    o += [I(f's_cmp_eq_u32 s{s_jt}, 3'), I('s_cbranch_scc1 OUT_narrow')]
    o += out_variant(8, cfg, ST, 'OUTa', Alloc(62, 70), regs)
    o += [I('OUT_narrow:')] + out_variant(4, cfg, ST, 'OUTb', Alloc(62, 70), regs)
    p = o + [I('OUT_fin:')] + ST.mark('end') + ST.rt() + ST.dump(2) + kernel_tail(name) + kernel_stop(name)
    return fix_hazards(ST.finalize(p, name))
```

```python
from common import *
from l1 import f2h
K = 1024
SRD_WSP, SRD_BSP = 4, 8

def sp_job(s_w, ST, pf=()):
    va = Alloc(2, 32); sa = Alloc(50, 76)
    Zf = OpF('z', SRD_WS, 8, 4, [96 * K + 8 * K * i for i in range(8)], va, sa, gran=1, adv=56 * 1024)
    W = OpR('w', SRD_WSP, 4096, 256, 8, [0, 32 * K, 64 * K], va, sa, dyn=True)
    s_tt, s_ft, s_wm, s_wn, s_t, s_cnt, s_st, s_z, s_t2, s_we, s_ze = [sa.get() for _ in range(11)]
    TMP = va.get(3); V_L8 = va.get(); VB = va.get()
    o = srd(SRD_WSP, P_WSP, 2048 * 4096) + srd(SRD_BSP, P_BSP, 4096)
    o += [I(f's_and_b32 s{s_tt}, s{s_w}, 255'), I(f's_lshr_b32 s{s_ft}, s{s_w}, 8'),
          I(f's_lshr_b32 s{s_wm}, s{S_WAVE}, 1'), I(f's_and_b32 s{s_wn}, s{S_WAVE}, 1'),
          I(f's_lshl_b32 s{W.s_off}, s{s_tt}, 20'), I(f's_lshl_b32 s{Zf.s_off}, s{s_ft}, 13'), I(f's_add_u32 s{Zf.s_off}, s{Zf.s_off}, {Z2NF}'),
          I(f's_lshl_b32 s{s_t2}, s{s_wn}, 7')]
    acc = lambda i, j: 4 * (i * 8 + j)
    GT = va.get(8)
    BA = 128
    Z = 128
    ld = []
    ld += [I(f's_lshl_b32 s{s_z}, s{s_tt}, 4'), I(f's_lshl_b32 s{s_t}, s{s_wn}, 3'), I(f's_add_u32 s{s_z}, s{s_z}, s{s_t}'),
           I(f's_lshl_b32 s{s_st}, s{s_z}, 5'),
           I(f'v_and_b32 v{VB}, 15, v{V_LANE}'), I(f'v_lshlrev_b32 v{TMP}, 1, v{VB}'), I(f'v_lshlrev_b32 v{VB}, 2, v{VB}'),
           I(f'v_lshlrev_b32 v{V_L8}, 3, v{V_LANE}')]
    ld += [I(f'buffer_load_ushort a{BA + j}, v{TMP}, {sr(SRD_BSP,4)}, s{s_st} offen offset:{32 * j}', tag='b') for j in range(8)]
    ld += [I(f's_lshl_b32 s{s_st}, s{s_st}, 1'), I(f's_add_u32 s{s_st}, s{s_st}, {GATE}')]
    ld += [I(f'buffer_load_dword v{GT + j}, v{VB}, {sr(SRD_WS,4)}, s{s_st} offen offset:{64 * j}', tag='b') for j in range(8)]
    ld += [I(f's_mul_i32 s{s_st}, s{s_z}, 56'), I(f's_lshl_b32 s{s_t}, s{s_ft}, 3'), I(f's_add_u32 s{s_st}, s{s_st}, s{s_t}'),
           I(f's_lshl_b32 s{s_t}, s{s_wm}, 2'), I(f's_add_u32 s{s_st}, s{s_st}, s{s_t}'), I(f's_lshl_b32 s{s_st}, s{s_st}, 9'),
           I(f's_add_u32 s{s_st}, s{s_st}, {Z1F}')]
    for j in range(8):
        ld += [I(f'buffer_load_dwordx2 {vr(Z + 2 * (j * 4 + i), 2)}, v{V_L8}, {sr(SRD_WS,4)}, s{s_st} offen offset:{512 * i}', tag='z') for i in range(4)]
        ld += [I(f's_add_u32 s{s_st}, s{s_st}, {56 * 512}')]
    un = [W_vm(['b', 'z'])]
    un += [I(f'v_sub_f32 v{GT + j}, 1.0, v{GT + j}') for j in range(8)]
    for j in range(7, -1, -1):
        for k in range(7, -1, -1):
            src = Z + 8 * j + k; d = Z + 16 * j + 2 * k
            un += [I(f'v_and_b32 v{d + 1}, 0xffff0000, v{src}'), I(f'v_lshlrev_b32 v{d}, 16, v{src}')]
        un += [I(f'v_mul_f32 v{Z + 16 * j + k}, v{Z + 16 * j + k}, v{GT + j}') for k in range(16)]
    un += [I(f's_lshl_b32 s{s_st}, s{s_tt}, 1'), I(f's_add_u32 s{s_st}, s{s_st}, s{s_wn}'), I(f's_mul_i32 s{s_st}, s{s_st}, 156'),
           I(f's_lshl_b32 s{s_t}, s{s_ft}, 2'), I(f's_add_u32 s{s_st}, s{s_st}, s{s_t}'), I(f's_lshl_b32 s{s_t}, s{s_wm}, 1'),
           I(f's_add_u32 s{s_st}, s{s_st}, s{s_t}'), I(f's_lshl_b32 s{s_st}, s{s_st}, 13'), I(f's_add_u32 s{s_st}, s{s_st}, {AF + 128 * 8192}'),
           I(f's_add_u32 s{s_z}, s{s_st}, 8192'), I(f'v_lshlrev_b32 v{TMP}, 4, v{V_LANE}')]
    bg = BG()
    bg.add(chop(ld, 48, 53, 32)); bg.add(chop(un, 56, 64, 32))
    ws_ = W.setup(TMP, s_t2); zs_ = Zf.setup(TMP, s_t)
    o += ws_[:W._ndma] + [I(f's_lshl_b32 s{s_t}, s{s_wm}, 2')] + zs_
    W.wrap = (s_we, 4096); Zf.wrap = (s_ze, 64 * 56 * 1024)
    o += [I(f's_add_u32 s{s_we}, s{W.s_off}, 4096'), I(f's_add_u32 s{s_ze}, s{Zf.s_off}, {64 * 56 * 1024}'),
          I(f's_mul_i32 s{s_t}, s{s_ft}, 37'), I(f's_lshr_b32 s{s_t}, s{s_t}, 3'),
          I(f's_lshl_b32 s{s_st}, s{s_t}, 7'), I(f's_add_u32 s{W.s_off}, s{W.s_off}, s{s_st}'),
          I(f's_mul_i32 s{s_st}, s{s_t}, {2 * 56 * 1024}'), I(f's_add_u32 s{Zf.s_off}, s{Zf.s_off}, s{s_st}')]
    pro, steps = gemm_steps(Zf, W, 64, (32, 80), (48, 96), acc, bg=bg, gs=2, bar0=0, mid=expand(ws_[W._ndma:]))
    post = list(pf)
    post += [I(f'v_accvgpr_read_b32 v{GT + j}, a{BA + j}') for j in range(8)]
    BB = 32
    post += [I(f'v_lshlrev_b32 v{BB + 2 * j}, 16, v{GT + j}') for j in range(8)]
    X = 48
    k = 0
    for j in range(8):
        for p in range(2):
            x = X + 8 * (k % 4); k += 1
            accs = [acc(2 * p, j) + r for r in range(4)] + [acc(2 * p + 1, j) + r for r in range(4)]
            post += [I(f'v_accvgpr_read_b32 v{x + r}, a{accs[r]}') for r in range(8)]
            post += [I(f'v_pk_add_f32 {vr(x + 2 * r, 2)}, {vr(x + 2 * r, 2)}, {vr(BB + 2 * j, 2)} op_sel_hi:[1,0]') for r in range(4)]
            post += [I(f'v_pk_mul_f32 {vr(x + 2 * r, 2)}, {vr(x + 2 * r, 2)}, {vr(Z + 16 * j + 8 * p + 2 * r, 2)}') for r in range(4)]
            post += [I(f'v_cvt_pk_bf16_f32 v{x + kk}, v{x + 2 * kk}, v{x + 2 * kk + 1}') for kk in range(4)]
            post += [I(f'buffer_store_dwordx4 {vr(x, 4)}, v{TMP}, {sr(SRD_WS,4)}, s{s_z if p else s_st} offen offset:{(j % 4) * 1024}', tag='st')]
        if j == 3: post += [I(f's_add_u32 s{s_st}, s{s_st}, 4096'), I(f's_add_u32 s{s_z}, s{s_z}, 4096')]
    parts = [('lin', ST.mark('job') + expand(o) + pro + ST.mark('pro')), ('steps', steps, 8, 'SP_loop', s_cnt), ('lin', ST.mark('loop') + post + ST.mark('end'))]
    return finish_multi(parts)
```

```python
import sys
from common import *
from l1 import kernel_l1, Cfg
from l2 import *
from outk import kernel_out
def build(path, diag=False, only=None, xoff=0, stf='', **kw):
    cfg = Cfg(); cfg.diag = diag; cfg.only = only; cfg.stf = stf
    for k, v in kw.items(): setattr(cfg, k, v)
    ks = [('l1_kernel', kernel_l1('l1_kernel', cfg), 256, 163840, '')]
    p, t = kernel_l2('l2_kernel', table_sched(), cfg)
    ks.append(('l2_kernel', p, 256, 163840, t))
    ks.append(('out_kernel', kernel_out('out_kernel', cfg), 256, 131072, ''))
    import json
    if diag: json.dump(STAMP_NAMES, open(path.replace('.s', '.json'), 'w'))
    open(path, 'w').write(assemble_file(ks))
    open('t/' + path.split('/')[-1] + '.full', 'w').write(assemble_file(ks, compact=False))
if __name__ == '__main__':
    build('t2.s', diag=True)
    Stamps.real = True
    build('t4.s', diag=True)
    Stamps.real = False
    build('t3.s', diag=True, only=['start', 'xo0', 'xo4', 'xo8', 'xo12', 'xo16', 'xo20', 'xo24', 'xo28', 'xo32', 'xo36', 'loop', 'xq0', 'xq2', 'xq4', 'xq6', 'xq8', 'xq10', 'xq12', 'qend'])
    build('gated_mix__compressed_kv_cla__mixer_gmlp__prompt.s', diag=False)
```

```python
import sys
def gen(name, region_log2, depth, iters, nwaves, mfma_per_load=0, mode='lds', shared=True):
    L = []
    A = L.append
    A(f'{name}_kernel:')
    A('  s_cmp_ge_u32 s2, 256')
    A(f'  s_cbranch_scc1 {name}_end')
    A('  s_load_dwordx2 s[4:5], s[0:1], 112')
    A('  s_load_dwordx2 s[6:7], s[0:1], 96')
    A('  v_lshrrev_b32 v1, 6, v0')
    A('  v_and_b32 v2, 63, v0')
    A('  v_lshlrev_b32 v2, 4, v2')
    A('  v_readfirstlane_b32 s16, v1')
    A('  s_waitcnt lgkmcnt(0)')
    A('  s_mov_b32 s8, s4')
    A('  s_mov_b32 s9, s5')
    A('  s_mov_b32 s10, 0x10000000')
    A('  s_mov_b32 s11, 0x20000')
    A('  s_mov_b32 s12, s6')
    A('  s_mov_b32 s13, s7')
    A('  s_mov_b32 s14, 0x100000')
    A('  s_mov_b32 s15, 0x20000')
    if shared:
        A('  s_and_b32 s17, s2, 7')
        A(f'  s_lshl_b32 s17, s17, {region_log2}')
        A('  s_lshr_b32 s18, s2, 3')
    else:
        A(f'  s_mov_b32 s17, 0')
        A('  s_mov_b32 s18, s2')
    A(f'  s_mul_i32 s18, s18, {nwaves}')
    A('  s_add_u32 s18, s18, s16')
    if shared:
        A(f'  s_mul_i32 s18, s18, {16384*7}')
    else:
        A(f'  s_mul_i32 s18, s18, {iters*16384}')
    A(f'  s_mov_b32 s19, {(1<<region_log2)-1}')
    A(f'  s_lshl_b32 s22, s16, 14')
    for r in range(0, 64):
        A(f'  v_mov_b32 v{64+r}, 0')
    for r in range(8):
        A(f'  v_mov_b32 v{8+r}, 0x3f803f80' )
        A(f'  v_mul_lo_u32 v{8+r}, v{8+r}, v0') if False else None
    A('  s_mov_b32 s30, 0x9E3779B1')
    for r in range(8):
        A(f'  v_add_u32 v{8+r}, {r*77+13}, v0')
        A(f'  v_mul_lo_u32 v{8+r}, v{8+r}, s30')
        A(f'  v_and_b32 v{8+r}, 0xbfffbfff, v{8+r}')
        A(f'  v_and_b32 v{8+r}, 0xc3ffc3ff, v{8+r}')
        A(f'  v_or_b32 v{8+r}, 0x3c003c00, v{8+r}')
    A('  s_barrier')
    A('  s_memtime s[24:25]')
    A('  s_memrealtime s[26:27]')
    A(f'  s_mov_b32 s21, {iters}')
    A(f'{name}_loop:')
    for u in range(16):
        A('  s_and_b32 s18, s18, s19')
        A('  s_add_u32 s20, s18, s17')
        if mode == 'lds':
            A(f'  s_add_u32 m0, s22, {u*1024}')
            A('  s_add_u32 s18, s18, 1024')
            A('  buffer_load_dwordx4 v2, s[8:11], s20 offen lds')
        elif mode == 'reg':
            A('  s_add_u32 s18, s18, 1024')
            A(f'  buffer_load_dwordx4 v[{128+4*u}:{131+4*u}], v2, s[8:11], s20 offen')
        elif mode == 'none':
            A('  s_add_u32 s18, s18, 1024')
        for m in range(mfma_per_load):
            a = 64 + 16*((u*mfma_per_load+m) % 4)
            A(f'  v_mfma_f32_32x32x16_bf16 v[{a}:{a+15}], v[8:11], v[12:15], v[{a}:{a+15}]')
        if mode != 'none':
            A(f'  s_waitcnt vmcnt({depth-1})')
    A('  s_sub_u32 s21, s21, 1')
    A('  s_cmp_lg_u32 s21, 0')
    A(f'  s_cbranch_scc1 {name}_loop')
    A('  s_waitcnt vmcnt(0)')
    A('  s_memtime s[28:29]')
    A('  s_memrealtime s[32:33]')
    A('  s_waitcnt lgkmcnt(0)')
    A('  s_sub_u32 s28, s28, s24')
    A('  s_sub_u32 s32, s32, s26')
    A('  v_mov_b32 v4, s28')
    A('  v_mov_b32 v5, s32')
    A('  s_nop 7')
    A('  v_add_f32 v6, v64, v80')
    A('  v_add_f32 v6, v6, v96')
    A('  v_add_f32 v6, v6, v112')
    A('  v_mov_b32 v7, v128')
    A('  s_lshl_b32 s3, s2, 4')
    A(f'  s_mul_i32 s3, s3, {nwaves}')
    A('  s_lshl_b32 s23, s16, 4')
    A('  s_add_u32 s3, s3, s23')
    A('  v_mov_b32 v3, s3')
    A('  v_cmp_eq_u32 vcc, 0, v2')
    A('  s_and_saveexec_b64 s[34:35], vcc')
    A('  buffer_store_dwordx4 v[4:7], v3, s[12:15], 0 offen')
    A('  s_waitcnt vmcnt(0)')
    A(f'{name}_end:')
    A('  s_endpgm')
    return L

def wrap(kernels):
    out = []
    for (name, _, nw, lds) in kernels:
        out.append(f'; @launch kernel={name}_kernel grid=(256,1,1) block=({nw*64},1,1) lds={lds}')
    out.append('.amdgcn_target "amdgcn-amd-amdhsa--gfx950"')
    out.append('.text')
    for (name, lines, nw, lds) in kernels:
        out.append(f'.globl {name}_kernel')
        out.append('.p2align 8')
        out.append(f'.type {name}_kernel,@function')
        out += [l for l in lines if l]
    out.append('.section .rodata,"a"')
    for (name, lines, nw, lds) in kernels:
        out.append('.p2align 6')
        out.append(f'.amdhsa_kernel {name}_kernel')
        out.append('  .amdhsa_next_free_vgpr 256')
        out.append('  .amdhsa_next_free_sgpr 102')
        out.append('  .amdhsa_accum_offset 256')
        out.append('  .amdhsa_group_segment_fixed_size 0')
        out.append('  .amdhsa_kernarg_size 120')
        out.append('  .amdhsa_user_sgpr_count 2')
        out.append('  .amdhsa_user_sgpr_kernarg_segment_ptr 1')
        out.append('  .amdhsa_system_sgpr_workgroup_id_x 1')
        out.append('.end_amdhsa_kernel')
    return '\n'.join(out) + '\n'

if __name__ == '__main__':
    ks = []
    cfgs = []
    for nw in (4, 8):
        for depth in (4, 8, 16):
            cfgs.append((f'l2_w{nw}_d{depth}', 21, depth, 32*4//nw, nw, 0, 'lds', True))
    cfgs.append(('l2reg_w4_d16', 21, 16, 32, 4, 0, 'reg', True))
    cfgs.append(('l2_w4_d16_r24', 24, 16, 32, 4, 0, 'lds', True))
    cfgs.append(('l2_w8_d16_r24', 24, 16, 16, 8, 0, 'lds', True))
    cfgs.append(('priv_w4_d16', 28, 16, 8, 4, 0, 'lds', False))
    cfgs.append(('mfma_only', 21, 16, 32, 4, 2, 'none', True))
    cfgs.append(('mfma_long', 21, 16, 320, 4, 2, 'none', True))
    cfgs.append(('l2_w4_d16_m1', 21, 16, 32, 4, 1, 'lds', True))
    cfgs.append(('l2_w4_d16_m2', 21, 16, 32, 4, 2, 'lds', True))
    cfgs.append(('l2_w4_d8_m2', 21, 8, 32, 4, 2, 'lds', True))
    cfgs.append(('l2_w8_d8_m2', 21, 8, 16, 8, 2, 'lds', True))
    for c in cfgs:
        name, rl, d, it, nw, mf, mode, sh = c
        ks.append((name, gen(name, rl, d, it, nw, mf, mode, sh), nw, 16384*nw))
    open('dma.s', 'w').write(wrap(ks))
    import json
    json.dump(cfgs, open('dma.json', 'w'))
```

```python
import sys, json
sys.path.insert(0, 'mb')
from gen_dma import wrap
def gen(name, shape, iters, lds_mode, dma_per_k, valu_per_mfma=0, agpr=True, order='row'):
    L = []; A = L.append
    A(f'{name}_kernel:')
    A('  s_cmp_ge_u32 s2, 256')
    A(f'  s_cbranch_scc1 {name}_end')
    A('  s_load_dwordx2 s[4:5], s[0:1], 112')
    A('  s_load_dwordx2 s[6:7], s[0:1], 96')
    A('  v_lshrrev_b32 v1, 6, v0')
    A('  v_and_b32 v2, 63, v0')
    A('  v_lshlrev_b32 v2, 4, v2')
    A('  v_readfirstlane_b32 s16, v1')
    A('  s_waitcnt lgkmcnt(0)')
    A('  s_mov_b32 s8, s4'); A('  s_mov_b32 s9, s5'); A('  s_mov_b32 s10, 0x10000000'); A('  s_mov_b32 s11, 0x20000')
    A('  s_mov_b32 s12, s6'); A('  s_mov_b32 s13, s7'); A('  s_mov_b32 s14, 0x100000'); A('  s_mov_b32 s15, 0x20000')
    A('  s_and_b32 s17, s2, 7'); A('  s_lshl_b32 s17, s17, 21'); A('  s_lshr_b32 s18, s2, 3')
    A('  s_mul_i32 s18, s18, 4'); A('  s_add_u32 s18, s18, s16'); A(f'  s_mul_i32 s18, s18, {16384*7}')
    A(f'  s_mov_b32 s19, {(1<<21)-1}')
    A('  s_lshl_b32 s22, s16, 15')
    for u in range(32):
        A('  s_and_b32 s18, s18, s19'); A('  s_add_u32 s20, s18, s17')
        A(f'  s_add_u32 m0, s22, {u*1024}'); A('  s_add_u32 s18, s18, 1024')
        A('  buffer_load_dwordx4 v2, s[8:11], s20 offen lds')
    A('  s_waitcnt vmcnt(0)')
    A('  v_add_u32 v3, s22, v2')
    for f in range(32):
        A(f'  ds_read_b128 v[{64+4*f}:{67+4*f}], v3 offset:{f*1024}')
    A('  s_waitcnt lgkmcnt(0)')
    for r in range(256):
        A(f'  v_accvgpr_write_b32 a{r}, 0')
    for r in range(32):
        A(f'  v_accvgpr_write_b32 a{128+r}, v{96+r}')
    if agpr == 'half_v':
        for r in range(128): A(f'  v_mov_b32 v{128+r}, 0')
    A('  s_barrier')
    A('  s_memtime s[24:25]'); A('  s_memrealtime s[26:27]')
    A('  s_waitcnt lgkmcnt(0)')
    A(f'  s_mov_b32 s21, {iters}')
    A(f'{name}_loop:')
    for half in range(2):
        base = 64 + 64*half
        nxt = 64 + 64*(1-half)
        mf = []
        if shape == 16:
            if order == 'row': seq = [(i, j) for i in range(8) for j in range(8)]
            elif order == 'col': seq = [(i, j) for j in range(8) for i in range(8)]
            elif order == 'diag': seq = [((j + d) % 8, j) for d in range(8) for j in range(8)]
            elif order == 'snake': seq = [(i, j if i % 2 == 0 else 7 - j) for i in range(8) for j in range(8)]
            elif order == 'blk2': seq = [(2 * a + (k >> 1), 2 * b + ((k & 1) ^ (k >> 1))) for a in range(4) for b in range(4) for k in range(4)]
            elif order == 'blk2s':
                seq = []
                for a in range(4):
                    bs = range(4) if a % 2 == 0 else range(3, -1, -1)
                    for n_, b in enumerate(bs):
                        lo, hi = (2*b, 2*b+1) if a % 2 == 0 else (2*b+1, 2*b)
                        r0, r1 = (2*a, 2*a+1) if n_ % 2 == 0 else (2*a+1, 2*a)
                        seq += [(r0, lo), (r1, lo), (r1, hi), (r0, hi)] if False else [(r0, lo), (r0, hi), (r1, hi), (r1, lo)]
            elif order == 'zig2':
                seq = []
                for a in range(4):
                    js = range(8) if a % 2 == 0 else range(7, -1, -1)
                    for n_, j in enumerate(js):
                        seq += [(2*a, j), (2*a+1, j)] if n_ % 2 == 0 else [(2*a+1, j), (2*a, j)]
            elif order == 'blk4': seq = [(4*a + i, 4*b + (j if i % 2 == 0 else 3 - j)) for a in range(2) for b in range(2) for i in range(4) for j in range(4)]
            elif order == 'z2': seq = [(2 * a + (k >> 1), 2 * b + (k & 1)) for a in range(4) for b in range(4) for k in range(4)]
            elif order == 'blk2c': seq = [(2 * a + ((k & 1) ^ (k >> 1)), 2 * b + (k >> 1)) for b in range(4) for a in range(4) for k in range(4)]
            for (i, j) in seq:
                if True:
                    c = 4*(i*8+j)
                    if agpr == 'half_a': c = 4 * ((i % 4) * 8 + j); mf.append(f'  v_mfma_f32_16x16x32_bf16 a[{c}:{c+3}], v[{64+4*i}:{64+4*i+3}], v[{96+4*j}:{96+4*j+3}], a[{c}:{c+3}]')
                    elif agpr == 'half_v': c = 128 + 4 * ((i % 4) * 8 + j); mf.append(f'  v_mfma_f32_16x16x32_bf16 v[{c}:{c+3}], v[{64+4*i}:{64+4*i+3}], v[{96+4*j}:{96+4*j+3}], v[{c}:{c+3}]')
                    elif agpr == 'opa': c = 4 * ((i % 4) * 8 + j); mf.append(f'  v_mfma_f32_16x16x32_bf16 a[{c}:{c+3}], v[{64+4*i}:{64+4*i+3}], a[{128+4*j}:{128+4*j+3}], a[{c}:{c+3}]')
                    else: mf.append(f'  v_mfma_f32_16x16x32_bf16 a[{c}:{c+3}], v[{base+4*i}:{base+4*i+3}], v[{base+32+4*j}:{base+32+4*j+3}], a[{c}:{c+3}]')
        else:
            for kk in range(2):
                for i in range(4):
                    for j in range(4):
                        c = 16*(i*4+j)
                        ai = base + 4*(kk*4+i); bj = base+32+4*(kk*4+j)
                        mf.append(f'  v_mfma_f32_32x32x16_bf16 a[{c}:{c+15}], v[{ai}:{ai+3}], v[{bj}:{bj+3}], a[{c}:{c+15}]')
        other = []
        if lds_mode == 'b128':
            for f in range(16):
                other.append(f'  ds_read_b128 v[{nxt+4*f}:{nxt+4*f+3}], v3 offset:{(f + 16*half)*1024}')
        elif lds_mode == 'mix':
            for f in range(8):
                other.append(f'  ds_read_b128 v[{nxt+4*f}:{nxt+4*f+3}], v3 offset:{(f + 16*half)*1024}')
            for f in range(8, 16):
                other.append(f'  ds_read_b64_tr_b16 v[{nxt+4*f}:{nxt+4*f+1}], v4 offset:{(f + 16*half)*1024}')
                other.append(f'  ds_read_b64_tr_b16 v[{nxt+4*f+2}:{nxt+4*f+3}], v4 offset:{(f + 16*half)*1024+512}')
        elif lds_mode == 'x2':
            for rep in range(2):
                for f in range(16):
                    other.append(f'  ds_read_b128 v[{nxt+4*f}:{nxt+4*f+3}], v3 offset:{(f + 16*half)*1024}')
        for u in range(dma_per_k):
            other.append('  s_and_b32 s18, s18, s19\n  s_add_u32 s20, s18, s17\n' + f'  s_add_u32 m0, s23, {u*1024}\n  s_add_u32 s18, s18, 1024\n' + '  buffer_load_dwordx4 v2, s[8:11], s20 offen lds')
        nv = valu_per_mfma * len(mf)
        n = len(mf); k = len(other)
        oi = 0
        for i, m in enumerate(mf):
            A(m)
            while oi < k and (oi + 1) * n <= (i + 1) * k * 1.15 + 0.5:
                A(other[oi]); oi += 1
            for v in range(valu_per_mfma):
                r = 200 + (i*valu_per_mfma + v) % 16
                A(f'  v_fma_f32 v{r}, v{r}, v{base + (i % 32)}, v{base+32+(i%32)}')
        while oi < k:
            A(other[oi]); oi += 1
        if dma_per_k: A(f'  s_waitcnt vmcnt({dma_per_k})')
        if lds_mode != 'none': A('  s_waitcnt lgkmcnt(0)')
    A('  s_sub_u32 s21, s21, 1'); A('  s_cmp_lg_u32 s21, 0'); A(f'  s_cbranch_scc1 {name}_loop')
    A('  s_waitcnt vmcnt(0)')
    A('  s_memtime s[28:29]'); A('  s_memrealtime s[32:33]'); A('  s_waitcnt lgkmcnt(0)')
    A('  s_sub_u32 s28, s28, s24'); A('  s_sub_u32 s32, s32, s26')
    A('  v_mov_b32 v4, s28'); A('  v_mov_b32 v5, s32'); A('  s_nop 15')
    A('  v_accvgpr_read_b32 v6, a0'); A('  v_mov_b32 v7, v200')
    A('  s_lshl_b32 s3, s2, 6'); A('  s_lshl_b32 s23, s16, 4'); A('  s_add_u32 s3, s3, s23')
    A('  v_mov_b32 v3, s3'); A('  v_cmp_eq_u32 vcc, 0, v2'); A('  s_and_saveexec_b64 s[34:35], vcc')
    A('  buffer_store_dwordx4 v[4:7], v3, s[12:15], 0 offen'); A('  s_waitcnt vmcnt(0)')
    A(f'{name}_end:'); A('  s_endpgm')
    idx = L.index('  v_add_u32 v3, s22, v2')
    L.insert(idx+1, '  v_lshrrev_b32 v4, 1, v2')
    L.insert(idx+2, '  v_add_u32 v4, s22, v4')
    L.insert(idx+3, '  s_lshl_b32 s23, s16, 13')
    L.insert(idx+4, '  s_add_u32 s23, s23, 0x20000')
    return L

cfgs = []
for a in ('half_a', 'half_v', 'opa', 'half_a', 'half_v', 'opa'):
    cfgs.append((f'm16_{a}_{len(cfgs)}', 16, 24, 'none', 0, 0, a, 'zig2'))
ks = []
for c in cfgs:
    ks.append((c[0], gen(*c), 4, 163840))
txt = wrap(ks).replace('.amdhsa_next_free_vgpr 256', '.amdhsa_next_free_vgpr 512')
open('mfma.s', 'w').write(txt)
json.dump(cfgs, open('mfma.json', 'w'))
```
